```python
import torch

def _softmax(x, axis=-1):
    return torch.softmax(x, dim=axis)
def _gelu(x):
    return torch.nn.functional.gelu(x, approximate="tanh")
def _silu(x):
    return torch.nn.functional.silu(x)
def _sigmoid(x):
    return torch.sigmoid(x)
def _layernorm(x, axis=-1, eps=1e-5):
    m = x.mean(dim=axis, keepdim=True)
    v = x.var(dim=axis, keepdim=True, unbiased=False)
    return (x - m) / torch.sqrt(v + eps)
def _scatter_add(tgt, idx, src, axis=0):
    return tgt.clone().index_add_(axis, idx, src)
def _segment_sum(src, seg, n):
    out = torch.zeros((n,) + src.shape[1:], dtype=src.dtype)
    return out.index_add_(0, seg, src)
def _pad(x, pw):
    flat = tuple(v for pair in reversed(pw) for v in pair)
    return torch.nn.functional.pad(x, flat)

kernel_name = 'standalone__mixer_s_mlp__prompt'

def setup_inputs():

    _w = (lambda a: (lambda t: t.to(torch.bfloat16) if t.is_floating_point() else t)(torch.as_tensor(a)))
    B, S, D, F = 1, 2048, 512, 1376
    return {
        "x":  _w((lambda *s: torch.randn(*s, dtype=torch.bfloat16) * 0.4)(B, S, D)),
        "w1": _w((lambda *s: torch.randn(*s, dtype=torch.bfloat16) * 3.2)(D, D) * (D ** -0.5)),
        "w2": _w((lambda *s: torch.randn(*s, dtype=torch.bfloat16) * 3.2)(D, D) * (D ** -0.5)),
        "w3": _w((lambda *s: torch.randn(*s, dtype=torch.bfloat16) * 3.2)(D, F) * (D ** -0.5)),
        "w4": _w((lambda *s: torch.randn(*s, dtype=torch.bfloat16) * 0.8)(F, D) * (F ** -0.5)),
    }

def reference(x, w1, w2, w3, w4):
    B, S, D = x.shape
    h = _gelu(_layernorm(x, axis=-1) @ w1)
    c = D // 4
    g0 = _pad(h[:, :, 0*c:1*c], ((0, 0), (1, 0), (0, 0)))[:, :S, :]
    g1 = _pad(h[:, :, 1*c:2*c], ((0, 0), (0, 1), (0, 0)))[:, 1:, :]
    g2 = _pad(h[:, :, 2*c:3*c], ((0, 0), (2, 0), (0, 0)))[:, :S, :]
    g3 = _pad(h[:, :, 3*c:   ], ((0, 0), (0, 2), (0, 0)))[:, 2:, :]
    hs = torch.concatenate([g0, g1, g2, g3], axis=-1) @ w2
    x1 = x + hs
    h2 = _gelu(_layernorm(x1, axis=-1) @ w3) @ w4
    return x1 + h2
```

```python
import re

REG_RE = re.compile(r'^(-|\|)?([vas])(\d+)$')
RNG_RE = re.compile(r'^(-|\|)?([vas])\[(\d+):(\d+)\]$')

def regs_of(op):
    op = op.strip()
    if op.startswith('-'):
        op = op[1:]
    if op.startswith('abs(') and op.endswith(')'):
        op = op[4:-1]
    m = REG_RE.match(op)
    if m:
        return {(m.group(2), int(m.group(3)))}
    m = RNG_RE.match(op)
    if m:
        return {(m.group(2), i) for i in range(int(m.group(3)), int(m.group(4)) + 1)}
    if op == 'vcc':
        return {('s', 'vcc')}
    if op == 'exec':
        return {('s', 'exec')}
    if op == 'm0':
        return {('s', 'm0')}
    return set()

TRANS = ('v_exp_f32', 'v_log_f32', 'v_rcp_f32', 'v_rsq_f32', 'v_sqrt_f32', 'v_sin_f32', 'v_cos_f32')

class Ins:
    __slots__ = ('text', 'mn', 'ops', 'kind', 'dst', 'src', 'passes', 'srcC', 'states', 'wide_store')
    def __init__(self, text):
        self.text = text
        body = text.split(';')[0].strip()
        self.states = 1
        self.passes = 0
        self.srcC = set()
        self.wide_store = False
        if not body or body.endswith(':') or body.startswith('.'):
            self.mn, self.ops, self.kind, self.dst, self.src = '', [], 'label', set(), set()
            self.states = 0
            return
        parts = body.split(None, 1)
        mn = parts[0]
        rest = parts[1] if len(parts) > 1 else ''
        ops = [o.strip() for o in rest.split(',')] if rest else []
        if ops:
            last = ops[-1].split()
            if last:
                ops[-1] = last[0]
        self.mn, self.ops = mn, ops
        R = [regs_of(o) for o in ops]
        allr = set().union(*R) if R else set()
        self.dst, self.src = set(), set()
        if mn == 's_nop':
            self.kind = 'nop'
            self.states = int(ops[0], 0) + 1
        elif mn.startswith('v_mfma'):
            self.kind = 'mfma'
            self.dst = R[0]
            self.src = R[1] | R[2] | R[3]
            self.srcC = R[3]
            self.passes = 8 if '32x32x16' in mn else 4 if '16x16x32' in mn else 16
        elif mn.startswith('v_'):
            self.kind = 'trans' if mn.replace('_e32', '').replace('_e64', '') in TRANS else 'valu'
            if mn.startswith('v_cmp'):
                self.dst = R[0]; self.src = set().union(*R[1:])
            elif 'permlane' in mn and 'swap' in mn:
                self.kind = 'permlane'
                self.dst = R[0] | R[1]; self.src = R[0] | R[1]
            elif mn.startswith('v_readfirstlane') or mn.startswith('v_readlane'):
                self.kind = 'readlane'
                self.dst = R[0]; self.src = set().union(*R[1:])
            elif '_co_' in mn:
                self.dst = R[0] | R[1]; self.src = set().union(*R[2:])
            else:
                self.dst = R[0]; self.src = set().union(*R[1:]) if len(R) > 1 else set()
                if mn.startswith(('v_fmac', 'v_dot2c', 'v_mac')):
                    self.src |= R[0]
                if mn.startswith('v_cndmask') and len(ops) == 3:
                    self.src |= {('s', 'vcc')}
        elif mn.startswith('ds_'):
            self.kind = 'ds'
            if mn.startswith('ds_read') or mn.startswith('ds_bpermute') or mn.startswith('ds_swizzle'):
                self.dst = R[0]; self.src = set().union(*R[1:])
            else:
                self.src = allr
        elif mn.startswith(('buffer_', 'global_')):
            self.kind = 'vmem'
            lds = bool(re.search(r'\blds\b', rest))
            if mn in ('buffer_inv', 'buffer_wbl2'):
                pass
            elif 'load' in mn and not lds and '_lds_' not in mn:
                self.dst = R[0]; self.src = set().union(*R[1:])
            else:
                self.src = allr
                if lds or '_lds_' in mn:
                    self.kind = 'dma'
                    self.src |= {('s', 'm0')}
                if 'store' in mn and ('x4' in mn or 'x3' in mn):
                    self.wide_store = True
        elif mn.startswith('s_'):
            self.kind = 'salu'
            if mn.startswith(('s_cmp', 's_cbranch', 's_branch', 's_waitcnt', 's_barrier', 's_endpgm', 's_sleep', 's_setprio')):
                self.src = allr
            elif mn.startswith(('s_load', 's_memtime', 's_memrealtime', 's_getreg', 's_getpc')):
                self.dst = R[0]; self.src = set().union(*R[1:]) if len(R) > 1 else set()
            else:
                self.dst = R[0] if R else set(); self.src = set().union(*R[1:]) if len(R) > 1 else set()
                if 'saveexec' in mn:
                    self.dst |= {('s', 'exec')}
        else:
            raise ValueError('unknown instruction: ' + text)

def is_vec(r):
    return r[0] in 'va'

def required_gap(p, c):
    need = 0
    valu_like = ('valu', 'trans', 'permlane', 'readlane')
    pv = {r for r in p.dst if is_vec(r)}
    ps = {r for r in p.dst if r[0] == 's'}
    if p.kind == 'mfma':
        d = p.dst
        tbl_rw = {4: 8, 8: 12, 16: 20}[p.passes]
        tbl_part = {4: 6, 8: 10, 16: 18}[p.passes]
        if c.kind == 'mfma':
            ab = c.src - c.srcC
            if d & ab:
                need = max(need, tbl_rw)
            if d & c.srcC:
                if not (d == c.srcC and p.passes == c.passes):
                    need = max(need, tbl_part)
            if d & c.dst and not (d == c.dst and p.passes == c.passes):
                need = max(need, tbl_rw)
        elif c.kind in valu_like or c.kind in ('ds', 'vmem', 'dma'):
            if d & (c.src | c.dst):
                need = max(need, tbl_rw)
        if c.kind in valu_like and (p.srcC & c.dst):
            need = max(need, {4: 3, 8: 7, 16: 15}[p.passes])
    if p.kind in valu_like:
        if c.kind == 'mfma' and (pv & c.src):
            need = max(need, 2)
        if c.kind == 'permlane' and (pv & c.src):
            need = max(need, 2)
        if c.kind == 'readlane' and (pv & c.src):
            need = max(need, 1)
        if p.kind == 'trans' and c.kind in valu_like + ('mfma', 'ds', 'vmem', 'dma') and (pv & c.src):
            need = max(need, 1)
        if ps:
            if c.kind in ('vmem', 'dma') and (ps & c.src):
                need = max(need, 5)
            if c.kind in valu_like and (ps & c.src):
                need = max(need, 4 if c.kind == 'readlane' else 2)
            if c.kind == 'salu' and (ps & c.src):
                need = max(need, 4)
    if p.kind == 'salu':
        if ('s', 'm0') in p.dst and c.kind == 'dma':
            need = max(need, 1)
        if ('s', 'exec') in p.dst and c.kind == 'mfma':
            need = max(need, 0)
    if p.wide_store and c.kind in valu_like + ('mfma',):
        data = regs_of(p.ops[0])
        if data & c.dst:
            need = max(need, 2)
    if p.wide_store and c.kind in ('ds', 'vmem') :
        data = regs_of(p.ops[0])
        if data & c.dst:
            need = max(need, 1)
    return need

class Emitter:
    def __init__(self):
        self.ins = []
        self.vm = []
        self.vm_n = 0
        self.lg = []
        self.lg_n = 0
        self.nops_inserted = 0

    def raw(self, text):
        for line in text.strip('\n').split('\n'):
            line = line.strip()
            if not line or line.startswith(';'):
                if line:
                    self.ins.append(Ins(''))
                    self.ins[-1].text = line
                continue
            self.ins.append(Ins(line))

    def __call__(self, text):
        last = None
        for line in text.strip('\n').split('\n'):
            line = line.strip()
            if not line:
                continue
            if line.startswith(';'):
                self.raw(line)
                continue
            i = Ins(line)
            self.ins.append(i)
            if i.kind in ('vmem', 'dma'):
                self.vm_n += 1
                self.vm.append((self.vm_n, True))
                last = ('vm', self.vm_n)
            elif i.kind == 'ds':
                self.lg_n += 1
                self.lg.append(self.lg_n)
                last = ('lg', self.lg_n)
        return last

    def optional_vm(self, text):
        self.raw(text)
        self.vm_n += 1
        self.vm.append((self.vm_n, False))
        return ('vm', self.vm_n)

    def label(self, name):
        self.raw(name + ':')

    def wait(self, *ids):
        vm_t = max([i[1] for i in ids if i and i[0] == 'vm'], default=None)
        lg_t = max([i[1] for i in ids if i and i[0] == 'lg'], default=None)
        parts = []
        if vm_t is not None and any(x[0] <= vm_t for x in self.vm):
            n = sum(1 for x in self.vm if x[0] > vm_t and x[1])
            n = min(n, 63)
            parts.append(f'vmcnt({n})')
            self.vm = [x for x in self.vm if x[0] > vm_t]
        if lg_t is not None and any(x <= lg_t for x in self.lg):
            n = min(sum(1 for x in self.lg if x > lg_t), 15)
            parts.append(f'lgkmcnt({n})')
            self.lg = [x for x in self.lg if x > lg_t]
        if parts:
            self.raw('s_waitcnt ' + ' '.join(parts))

    def wait_vm_all(self):
        self.raw('s_waitcnt vmcnt(0)')
        self.vm = []

    def wait_lg_all(self):
        self.raw('s_waitcnt lgkmcnt(0)')
        self.lg = []

    def forget_vm(self):
        self.vm = []

    def finalize(self):
        out = []
        window = []
        for i in self.ins:
            if i.kind == 'label':
                out.append(i)
                if i.text.endswith(':'):
                    pass
                continue
            need = 0
            for (p, dist) in window:
                g = required_gap(p, i)
                if g > dist:
                    need = max(need, g - dist)
            while need > 0:
                k = min(need, 16)
                n = Ins(f's_nop {k-1}')
                out.append(n)
                self.nops_inserted += 1
                window = [(p, d + k) for (p, d) in window]
                need -= k
            out.append(i)
            window = [(p, d + i.states) for (p, d) in window if d + i.states < 24]
            window.append((i, 0))
        self.out = out
        return '\n'.join(('' if x.kind == 'label' and x.text.endswith(':') else '    ') + x.text for x in out) + '\n'
```

```python
import sys, math, struct
from collections import deque
from emit import Emitter

KNAME = "standalone__mixer_s_mlp__prompt_kernel"
T, D, F = 2048, 512, 1376

WS_FLAGS = 0x0
WS_STATS = 0x10000
WS_HSH   = 0x100000
WS_X1    = 0x300000
WS_G     = 0x500000
WS_STAMP = 0xB00000
WS_SIZE  = 0xC00000
G_TILE = 86 * 1024

def f32bits(x):
    return struct.unpack('<I', struct.pack('<f', x))[0]

C1 = -2.0 * math.sqrt(2.0 / math.pi) * math.log2(math.e)
C2 = C1 * 0.044715
EPS = 1e-5

S_X, S_W1, S_W2, S_W3, S_W4, S_OUT, S_WS, S_DBG = 4, 8, 12, 16, 20, 24, 28, 32
S_PTR = 36
sG, sQ, sI, sJ, sW, sLOC, sU0 = 52, 53, 54, 55, 56, 57, 58
t0, t1, t2, t3, t4, t5 = 59, 60, 61, 62, 63, 64
sM1, sM2, sM3, sMD = 66, 68, 70, 72
sC1, sC2 = 74, 76
sOFF, sOFFW, sSPIN, sMASK = 78, 79, 80, 81
STAMP_REGS = [82 + 2 * k for k in range(10)] + [44, 46, 48, 50] + [8, 10, 12, 14]
NSTAMP = len(STAMP_REGS)

LDS_B = 64 * 1024
LDS_C = 128 * 1024
CS1_LDS = 159 * 1024
CS3_LDS = LDS_B
EXCH_LDS = 72 * 1024

def srd(n):
    return f's[{n}:{n+3}]'

def vr(b, n=4):
    return f'v[{b}:{b+n-1}]'

def ar(b, n=4):
    return f'a[{b}:{b+n-1}]'

def w3_block(sig, u):
    if sig < 8:
        return 128 + 3 * sig + u
    if sig < 29:
        return 3 * (sig - 8) + u
    b = 152 + 3 * (sig - 29) + u
    return 63 if b == 160 else b

vL = 1
vD = 4
vA = 8
vXO = 14
vST = 15
vRES = 16
vONE = 24
vPV, vPA, vFA = 28, 29, 30
vMEAN, vRSTD, vC1 = 32, 34, 36
vGA, vGB = 38, 2
vT = 40
vX = 64
vACC = 128
vACS, vASUM, vAQ = 144, 148, 152
vFB = 160
vCB = 208
vCS = 220
vACC3 = 64
vCS3 = 112


class Gen:
    def __init__(self, stamps=False, stop_after=None, **opts):
        self.e = Emitter()
        self.stamps = stamps
        self.stop_after = stop_after
        self.o = opts
        self.nstamp = 0
        self.uid = 0

    def lab(self, base):
        self.uid += 1
        return f'L{base}{self.uid}'

    def stamp(self):
        if self.stamps:
            k = self.nstamp
            assert k < NSTAMP
            self.e.raw(f's_memtime s[{STAMP_REGS[k]}:{STAMP_REGS[k]+1}]')
            self.nstamp += 1

    def both_scopes(self, lines):
        e = self.e
        a, b = self.lab('slow'), self.lab('done')
        e.raw(f's_cmp_eq_u32 s{sLOC}, 0')
        e.raw(f's_cbranch_scc1 {a}')
        last = None
        for ln in lines:
            last = e(ln)
        e.raw(f's_branch {b}')
        e.label(a)
        for ln in lines:
            e.raw(ln + ' sc1')
        e.label(b)
        return last

    def publish(self, store_id):
        e = self.e
        e.wait(store_id)
        e(f'v_mov_b32 v{vPV}, 1')
        e.raw('s_mov_b64 exec, 1')
        self.both_scopes([f'buffer_store_dword v{vPV}, v{vFA}, {srd(S_WS)}, 0 offen'])
        e.raw('s_mov_b64 exec, -1')

    def poll(self):
        e = self.e
        lp, ok, ns = self.lab('poll'), self.lab('pollok'), self.lab('nosleep')
        e.raw(f's_mov_b32 s{sSPIN}, 0')
        e.label(lp)
        e.raw(f'buffer_load_dword v{vPV}, v{vPA}, {srd(S_WS)}, 0 offen sc1')
        e.raw(f's_add_u32 s{sSPIN}, s{sSPIN}, 1')
        e.raw(f's_cmp_gt_u32 s{sSPIN}, 0x40000')
        e.raw(f's_cbranch_scc1 {ok}')
        e.raw('s_waitcnt vmcnt(0)')
        e.raw(f'v_cmp_ne_u32 vcc, 1, v{vPV}')
        e.raw(f's_cbranch_vccz {ok}')
        e.raw(f's_cmp_lg_u32 s{sLOC}, 0')
        e.raw(f's_cbranch_scc1 {lp}')
        e.raw('s_sleep 8')
        e.raw(f's_branch {lp}')
        e.label(ok)
        e.raw('s_waitcnt vmcnt(0)')
        e.forget_vm()

    def gelu_pairs_packed(self, pairs, scale_in=True):
        e = self.e
        n = len(pairs)
        assert n <= 4
        X = [vT + 2 * k for k in range(n)]
        Y = [vT + 8 + 2 * k for k in range(n)]
        for k, (a, c, o) in enumerate(pairs):
            e(f'v_pk_fma_f32 {vr(X[k],2)}, {vr(c,2)}, {vr(vMEAN,2)}, {vr(a,2)} op_sel_hi:[1,0,1]')
        for k in range(n):
            e(f'v_pk_mul_f32 {vr(X[k],2)}, {vr(X[k],2)}, {vr(vRSTD,2)} op_sel_hi:[1,0]')
        for k in range(n):
            e(f'v_pk_mul_f32 {vr(Y[k],2)}, {vr(X[k],2)}, {vr(X[k],2)}')
        for k in range(n):
            e(f'v_pk_fma_f32 {vr(Y[k],2)}, {vr(Y[k],2)}, s[{sC2}:{sC2+1}], {vr(vC1,2)}')
        for k in range(n):
            e(f'v_pk_mul_f32 {vr(Y[k],2)}, {vr(Y[k],2)}, {vr(X[k],2)}')
        for k in range(n):
            e(f'v_exp_f32 v{Y[k]}, v{Y[k]}\nv_exp_f32 v{Y[k]+1}, v{Y[k]+1}')
        for k in range(n):
            e(f'v_pk_add_f32 {vr(Y[k],2)}, {vr(Y[k],2)}, 1.0 op_sel_hi:[1,0]')
        for k in range(n):
            e(f'v_rcp_f32 v{Y[k]}, v{Y[k]}\nv_rcp_f32 v{Y[k]+1}, v{Y[k]+1}')
        for k in range(n):
            e(f'v_pk_mul_f32 {vr(X[k],2)}, {vr(X[k],2)}, {vr(Y[k],2)}')
        for k, (a, c, o) in enumerate(pairs):
            e(f'v_cvt_pk_bf16_f32 v{o}, v{X[k]}, v{X[k]+1}')

    def xgroup_sum(self, r, tmp):
        e = self.e
        e(f'v_mov_b32 v{tmp}, v{r}')
        e(f'v_permlane16_swap_b32 v{r}, v{tmp}')
        e(f'v_add_f32 v{r}, v{r}, v{tmp}')
        self.xhalf_sum(r, tmp)

    def xhalf_sum(self, r, tmp):
        e = self.e
        e(f'v_mov_b32 v{tmp}, v{r}')
        e(f'v_permlane32_swap_b32 v{r}, v{tmp}')
        e(f'v_add_f32 v{r}, v{r}, v{tmp}')

    def finish_stats(self, rs, rq, mean_out, rstd_out):
        e = self.e
        e(f'v_mul_f32 v{rs}, {f32bits(1.0/D):#x}, v{rs}')
        e(f'v_mul_f32 v{rq}, {f32bits(1.0/D):#x}, v{rq}')
        e(f'v_fma_f32 v{rq}, -v{rs}, v{rs}, v{rq}')
        e(f'v_max_f32 v{rq}, 0, v{rq}')
        e(f'v_add_f32 v{rq}, {f32bits(EPS):#x}, v{rq}')
        e(f'v_rsq_f32 v{rstd_out}, v{rq}')
        e(f'v_sub_f32 v{mean_out}, 0, v{rs}')

    def prologue(self):
        e = self.e
        e(f"""
        s_cmp_ge_u32 s2, 256
        s_cbranch_scc1 Lend
        s_load_dwordx16 s[{S_PTR}:{S_PTR+15}], s[0:1], 0
        v_lshrrev_b32 v2, 6, v0
        v_and_b32 v{vL}, 63, v0
        s_and_b32 s{t0}, s2, 7
        v_readfirstlane_b32 s{sW}, v2
        s_lshr_b32 s{t1}, s2, 3
        s_and_b32 s{t1}, s{t1}, 1
        s_lshl_b32 s{sG}, s{t0}, 1
        s_add_u32 s{sG}, s{sG}, s{t1}
        s_lshr_b32 s{sQ}, s2, 4
        s_lshr_b32 s{sI}, s{sQ}, 3
        s_lshl_b32 s{t0}, s{sG}, 1
        s_add_u32 s{sI}, s{sI}, s{t0}
        s_and_b32 s{sJ}, s{sQ}, 7
        s_mul_i32 s{sU0}, s{sQ}, 3
        s_sub_i32 s{t0}, s{sQ}, 11
        s_max_i32 s{t0}, s{t0}, 0
        s_sub_u32 s{sU0}, s{sU0}, s{t0}
        s_mov_b32 s{sC1}, {f32bits(C1):#x}
        s_mov_b32 s{sC1+1}, {f32bits(C1):#x}
        s_mov_b32 s{sC2}, {f32bits(C2):#x}
        s_mov_b32 s{sC2+1}, {f32bits(C2):#x}
        s_mov_b32 s{sMASK}, 0xffff0000
        s_mov_b32 s{sLOC}, 0
        """)
        self.stamp()
        sizes = [(S_X, 0, T * D * 2), (S_W1, 1, D * D * 2), (S_W2, 2, D * D * 2), (S_W3, 3, D * F * 2 + 2048),
                 (S_W4, 4, F * D * 2), (S_OUT, 5, T * D * 2), (S_DBG, 6, 256), (S_WS, 7, WS_SIZE)]
        for (s, k, size) in sizes:
            e(f's_mov_b32 s{s+2}, {size:#x}\ns_mov_b32 s{s+3}, 0x20000')
        e(f"""
        s_lshr_b32 s{t0}, s{sJ}, 2
        s_add_u32 s{t0}, s{t0}, 1
        s_sub_i32 s{t1}, 0, s{t0}
        s_bitcmp1_b32 s{sJ}, 1
        s_cselect_b32 s{t0}, s{t0}, s{t1}
        s_lshl_b32 s{t1}, s{sI}, 6
        s_lshl_b32 s{t2}, s{sW}, 4
        s_add_u32 s{t1}, s{t1}, s{t2}
        s_add_i32 s{t0}, s{t0}, s{t1}
        """)
        e(f"""
        v_and_b32 v2, 15, v{vL}
        v_lshrrev_b32 v3, 4, v{vL}
        v_add_u32 v40, s{t0}, v2
        v_lshlrev_b32 v41, 10, v40
        v_lshl_add_u32 v41, v3, 4, v41
        v_cmp_gt_u32 vcc, {T}, v40
        v_mov_b32 v42, 0x40000000
        v_cndmask_b32 v{vXO}, v42, v41, vcc
        v_lshrrev_b32 v40, 3, v{vL}
        v_and_b32 v41, 7, v{vL}
        v_and_b32 v42, 1, v3
        v_lshlrev_b32 v42, 1, v42
        v_xor_b32 v41, v41, v42
        s_lshl_b32 s{t1}, s{sJ}, 7
        v_lshlrev_b32 v40, 10, v40
        v_add_u32 v40, s{t1}, v40
        v_lshl_add_u32 v{vD}, v41, 4, v40
        v_xor_b32 v41, 4, v41
        v_lshl_add_u32 v{vD+1}, v41, 4, v40
        v_add_u32 v{vD+2}, {2*7168}, v{vD}
        v_add_u32 v{vD+3}, {2*7168}, v{vD+1}
        v_add_u32 v{vD+3}, 7168, v{vD+3}
        v_add_u32 v{vD+1}, 7168, v{vD+1}
        """)
        self.tr16_addr(row_mul=8, base=0, with_w=True)
        e(f"""
        v_and_b32 v40, 3, v{vL}
        v_cmp_eq_u32 s[{sM1}:{sM1+1}], 1, v40
        v_cmp_eq_u32 s[{sM2}:{sM2+1}], 2, v40
        v_cmp_eq_u32 s[{sM3}:{sM3+1}], 3, v40
        v_bfe_u32 v41, v{vL}, 2, 2
        v_cmp_eq_u32 s[{sMD}:{sMD+1}], v3, v41
        v_mov_b32 v{vONE}, 0x3f803f80
        v_mov_b32 v{vONE+1}, 0x3f803f80
        v_mov_b32 v{vONE+2}, 0x3f803f80
        v_mov_b32 v{vONE+3}, 0x3f803f80
        v_mov_b32 v{vC1}, s{sC1}
        v_mov_b32 v{vC1+1}, s{sC1}
        """)
        e.raw('s_waitcnt lgkmcnt(0)')
        for (s, k, size) in sizes:
            p = S_PTR + 2 * k
            if s == S_W3:
                e(f's_sub_u32 s{s}, s{p}, 2048\ns_subb_u32 s{s+1}, s{p+1}, 0')
            else:
                e(f's_mov_b32 s{s}, s{p}\ns_mov_b32 s{s+1}, s{p+1}')
        skip = self.lab('nozero')
        e(f"""
        s_or_b32 s{t0}, s{sQ}, s{sW}
        s_cmp_lg_u32 s{t0}, 0
        s_cbranch_scc1 {skip}
        s_lshl_b32 s{t0}, s{sG}, 10
        v_lshlrev_b32 v40, 4, v{vL}
        v_add_u32 v40, s{t0}, v40
        v_mov_b32 v44, 0
        v_mov_b32 v45, 0
        v_mov_b32 v46, 0
        v_mov_b32 v47, 0
        """)
        e.optional_vm(f'buffer_store_dwordx4 v[44:47], v40, {srd(S_WS)}, 0 offen sc1')
        e.label(skip)

    def tr16_addr(self, row_mul, base, with_w=False):
        e = self.e
        e(f"""
        v_lshrrev_b32 v40, 4, v{vL}
        v_bfe_u32 v41, v{vL}, 2, 2
        v_mul_u32_u24 v42, {row_mul}, v40
        v_add_u32 v42, v42, v41
        v_lshlrev_b32 v42, 7, v42
        v_bfe_u32 v43, v{vL}, 1, 1
        v_lshl_add_u32 v42, v43, 4, v42
        v_and_b32 v43, 1, v{vL}
        v_lshl_add_u32 v42, v43, 3, v42
        v_lshrrev_b32 v41, 1, v41
        v_and_b32 v40, 1, v40
        v_lshlrev_b32 v40, 1, v40
        v_or_b32 v40, v40, v41
        v_lshlrev_b32 v40, 5, v40
        """)
        if base:
            e(f'v_add_u32 v42, {base}, v42')
        for u in range(4):
            e(f'v_xor_b32 v41, {32*u}, v40\nv_add_u32 v{vA+u}, v41, v42')
        if with_w:
            e(f's_lshl_b32 s{t1}, s{sW}, 5\nv_xor_b32 v41, s{t1}, v40\nv_add_u32 v{vA+4}, v41, v42')

    def p1(self):
        e = self.e
        Wc, Xl = [None] * 4, [None] * 16
        e(f's_lshl_b32 s{t2}, s{sW}, 15\ns_lshl_b32 s{t3}, s{sW}, 12')
        for c in range(4):
            e(f's_add_u32 s{sOFFW}, s{t2}, {c*131072}\ns_add_u32 m0, s{t3}, {c*16384}')
            for k in range(4):
                Wc[c] = e(f'buffer_load_dwordx4 v{vD+k}, {srd(S_W1)}, s{sOFFW} offen offset:{k*1024} lds')
            for s in range(4 * c, 4 * c + 4):
                Xl[s] = e(f'buffer_load_dwordx4 {vr(vX+4*s)}, v{vXO}, {srd(S_X)}, 0 offen offset:{s*64}')
        e(f"""
        v_lshrrev_b32 v40, 3, v{vL}
        v_and_b32 v41, 7, v{vL}
        v_and_b32 v42, 6, v40
        v_xor_b32 v41, v41, v42
        s_lshl_b32 s{t1}, s{sJ}, 7
        v_lshlrev_b32 v40, 10, v40
        v_add_u32 v40, s{t1}, v40
        v_lshl_add_u32 v48, v41, 4, v40
        v_add_u32 v49, 7168, v48
        v_add_u32 v50, {2*7168}, v48
        v_add_u32 v51, {3*7168}, v48
        s_lshl_b32 s{t4}, s{sW}, 17
        s_lshl_b32 s{t5}, s{sW}, 14
        """)
        self.W2ids = []
        w2q = deque()
        for g in range(4):
            for k in range(4):
                pre = f's_add_u32 s{sOFFW}, s{t4}, {g*32768}\ns_add_u32 m0, s{t5}, {LDS_B + g*4096}\ns_nop 0\n' if k == 0 else ''
                w2q.append(pre + f'buffer_load_dwordx4 v{48+k}, {srd(S_W2)}, s{sOFFW} offen offset:{k*1024} lds')

        def reads(s):
            b = vFB + 16 * (s % 3)
            out = []
            for u in range(4):
                for m in range(2):
                    out.append(f'ds_read_b64_tr_b16 {vr(b+4*u+2*m,2)}, v{vA+u} offset:{s*4096+m*512}')
            cb = vCB + 4 * (s % 3)
            for m in range(2):
                out.append(f'ds_read_b64_tr_b16 {vr(cb+2*m,2)}, v{vA+4} offset:{s*4096+m*512}')
            return out

        rd = {}
        e.wait(Wc[0])
        e.raw('s_barrier')
        self.stamp()
        skip = self.lab('nodbg')
        e(f"""
        s_cmp_lg_u32 s{sW}, 0
        s_cbranch_scc1 {skip}
        s_getreg_b32 s{t0}, hwreg(HW_REG_XCC_ID, 0, 4)
        s_or_b32 s{t0}, s{t0}, 0x80
        s_lshl_b32 s{t1}, s{sG}, 4
        s_add_u32 s{t1}, s{t1}, s{sQ}
        v_mov_b32 v40, s{t0}
        v_mov_b32 v41, s{t1}
        s_mov_b64 exec, 1
        """)
        e.optional_vm(f'buffer_store_byte v40, v41, {srd(S_DBG)}, 0 offen sc1')
        e.raw('s_mov_b64 exec, -1')
        e.label(skip)
        for s in (0, 1):
            for ln in reads(s):
                rd[s] = e(ln)
        for s in range(16):
            if s + 2 < 16 and (s + 2) % 4 == 0:
                e.wait(Wc[(s + 2) // 4])
                e.raw('s_barrier')
            e.wait(Xl[s], rd[s])
            nxt = deque(reads(s + 2)) if s + 2 < 16 else deque()
            b = vFB + 16 * (s % 3)
            cb = vCB + 4 * (s % 3)
            xb = vr(vX + 4 * s)
            C = lambda r: ('0' if s == 0 else vr(r))
            mf = [f'v_mfma_f32_16x16x32_bf16 {vr(vACC+4*u)}, {vr(b+4*u)}, {xb}, {C(vACC+4*u)}' for u in range(4)]
            mf.append(f'v_mfma_f32_16x16x32_bf16 {vr(vAQ)}, {xb}, {xb}, {C(vAQ)}')
            mf.append(f'v_mfma_f32_16x16x32_bf16 {vr(vASUM)}, {vr(vONE)}, {xb}, {C(vASUM)}')
            mf.append(f'v_mfma_f32_16x16x32_bf16 {vr(vACS)}, {vr(cb)}, {vr(vONE)}, {C(vACS)}')
            for k, m in enumerate(mf):
                e(m)
                for _ in range(2 if k < 3 else 1):
                    if nxt:
                        rd[s + 2] = e(nxt.popleft())
            while nxt:
                rd[s + 2] = e(nxt.popleft())
            if w2q:
                self.W2ids.append(e(w2q.popleft()))
        self.stamp()
        e(f"""
        s_lshl_b32 s{t0}, s{sI}, 6
        s_lshl_b32 s{t1}, s{sW}, 4
        s_add_u32 s{t0}, s{t0}, s{t1}
        v_and_b32 v40, 15, v{vL}
        v_add_u32 v40, s{t0}, v40
        v_lshlrev_b32 v40, 10, v40
        v_lshrrev_b32 v41, 4, v{vL}
        v_lshl_add_u32 v40, v41, 3, v40
        s_lshl_b32 s{t1}, s{sJ}, 7
        v_add_u32 v40, s{t1}, v40
        s_lshl_b32 s{t1}, s{sG}, 4
        v_mov_b32 v31, s{t1}
        """)
        dbg = e(f'buffer_load_dwordx4 v[236:239], v31, {srd(S_DBG)}, 0 offen sc1')
        self.resid = None
        for u in range(4):
            self.resid = e(f'buffer_load_dwordx2 {vr(vRES+2*u,2)}, v40, {srd(S_X)}, 0 offen offset:{u*32}')
        e(f"""
        v_lshrrev_b32 v40, 4, v{vL}
        v_lshlrev_b32 v40, 4, v40
        s_lshl_b32 s{t0}, s{sW}, 6
        s_add_u32 s{t0}, s{t0}, {CS1_LDS}
        v_add_u32 v41, s{t0}, v40
        v_add_u32 v40, {CS1_LDS}, v40
        s_mov_b32 exec_lo, 0x00010001
        s_mov_b32 exec_hi, 0x00010001
        """)
        e(f'ds_write_b128 v41, {vr(vACS)}')
        e.raw('s_mov_b64 exec, -1')
        e.wait_lg_all()
        e.raw('s_barrier')
        csr = None
        for u in range(4):
            csr = e(f'ds_read_b128 {vr(vCS+4*u)}, v40 offset:{u*64}')
        e(f"""
        v_cndmask_b32 v42, v{vAQ}, v{vAQ+1}, s[{sM1}:{sM1+1}]
        v_cndmask_b32 v42, v42, v{vAQ+2}, s[{sM2}:{sM2+1}]
        v_cndmask_b32 v42, v42, v{vAQ+3}, s[{sM3}:{sM3+1}]
        v_cndmask_b32 v42, 0, v42, s[{sMD}:{sMD+1}]
        """)
        self.xgroup_sum(42, 43)
        e(f'v_mov_b32 v44, v{vASUM}')
        self.finish_stats(44, 42, vMEAN, vRSTD)
        e.wait(csr)
        outs = [56, 57, 58, 59, 60, 61, 62, 63]
        for p in range(2):
            prs = []
            for uu in range(2):
                u = 2 * p + uu
                for h in range(2):
                    prs.append((vACC + 4 * u + 2 * h, vCS + 4 * u + 2 * h, outs[4 * p + 2 * uu + h]))
            self.gelu_pairs_packed(prs)
        self.stamp()
        self.group_check(dbg)
        e(f"""
        s_lshl_b32 s{t0}, s{sI}, 2
        s_add_u32 s{t0}, s{t0}, s{sW}
        s_lshl_b32 s{t0}, s{t0}, 4
        s_lshl_b32 s{t1}, s{sJ}, 1
        s_add_u32 s{t0}, s{t0}, s{t1}
        s_lshl_b32 s{t0}, s{t0}, 10
        s_add_u32 s{t0}, s{t0}, {WS_HSH}
        v_lshlrev_b32 v40, 4, v{vL}
        v_add_u32 v{vST}, s{t0}, v40
        """)
        st = self.both_scopes([f'buffer_store_dwordx4 v[56:59], v{vST}, {srd(S_WS)}, 0 offen',
                               f'buffer_store_dwordx4 v[60:63], v{vST}, {srd(S_WS)}, 0 offen offset:1024'])
        e(f"""
        s_and_b32 s{t0}, s{sI}, 1
        s_lshl_b32 s{t0}, s{t0}, 5
        s_lshl_b32 s{t1}, s{sW}, 3
        s_add_u32 s{t0}, s{t0}, s{t1}
        s_add_u32 s{t1}, s{t0}, s{sJ}
        s_lshl_b32 s{t1}, s{t1}, 2
        s_lshl_b32 s{t2}, s{sG}, 10
        s_add_u32 s{t1}, s{t1}, s{t2}
        v_mov_b32 v{vFA}, s{t1}
        s_lshl_b32 s{t0}, s{t0}, 2
        s_add_u32 s{t0}, s{t0}, s{t2}
        v_and_b32 v40, 7, v{vL}
        v_lshlrev_b32 v40, 2, v40
        v_add_u32 v{vPA}, s{t0}, v40
        """)
        return st

    def group_check(self, dbg):
        e = self.e
        lp, ok, again = self.lab('grp'), self.lab('grpok'), self.lab('grpagain')
        e.wait(dbg)
        e.raw(f's_mov_b32 s{sSPIN}, 0')
        e.label(lp)
        e(f"""
        v_readfirstlane_b32 s{t0}, v236
        v_readfirstlane_b32 s{t1}, v237
        v_readfirstlane_b32 s{t2}, v238
        v_readfirstlane_b32 s{t3}, v239
        s_nop 3
        s_and_b32 s{t4}, s{t0}, s{t1}
        s_and_b32 s{t5}, s{t2}, s{t3}
        s_and_b32 s{t4}, s{t4}, s{t5}
        s_and_b32 s{t4}, s{t4}, 0x80808080
        s_cmp_eq_u32 s{t4}, 0x80808080
        s_cbranch_scc1 {ok}
        s_add_u32 s{sSPIN}, s{sSPIN}, 1
        s_cmp_gt_u32 s{sSPIN}, 0x40000
        s_cbranch_scc1 {ok}
        s_sleep 4
        """)
        e.raw(f'buffer_load_dwordx4 v[236:239], v31, {srd(S_DBG)}, 0 offen sc1')
        e.raw('s_waitcnt vmcnt(0)')
        e.raw(f's_branch {lp}')
        e.label(ok)
        e(f"""
        s_xor_b32 s{t1}, s{t1}, s{t0}
        s_xor_b32 s{t2}, s{t2}, s{t0}
        s_xor_b32 s{t3}, s{t3}, s{t0}
        s_or_b32 s{t1}, s{t1}, s{t2}
        s_or_b32 s{t1}, s{t1}, s{t3}
        s_lshr_b32 s{t2}, s{t0}, 8
        s_xor_b32 s{t2}, s{t2}, s{t0}
        s_and_b32 s{t2}, s{t2}, 0xffffff
        s_or_b32 s{t1}, s{t1}, s{t2}
        s_cmp_eq_u32 s{t1}, 0
        s_cselect_b32 s{sLOC}, 1, 0
        """)
        if self.o.get('force_slow'):
            e(f's_mov_b32 s{sLOC}, 0')

    def w3_setup(self):
        e = self.e
        e(f"""
        v_lshrrev_b32 v40, 2, v{vL}
        v_and_b32 v41, 7, v40
        v_lshrrev_b32 v40, 3, v40
        v_lshl_add_u32 v40, v40, 4, v41
        v_mul_u32_u24 v40, {F*2}, v40
        v_and_b32 v41, 3, v{vL}
        v_lshl_add_u32 v40, v41, 4, v40
        v_add_u32 v{vD}, 2048, v40
        v_add_u32 v{vD+1}, {2048 + 64 - 1024}, v40
        v_add_u32 v{vD+2}, {2048 + 128 - 2048}, v40
        s_lshr_b32 s{t0}, s{sW}, 1
        s_lshl_b32 s{t0}, s{t0}, 5
        s_and_b32 s{t1}, s{sW}, 1
        s_lshl_b32 s{t1}, s{t1}, 3
        s_add_u32 s{t0}, s{t0}, s{t1}
        s_mul_i32 s{t0}, s{t0}, {F*2}
        s_lshl_b32 s{t1}, s{sU0}, 6
        s_add_u32 s36, s{t0}, s{t1}
        s_mul_i32 s37, s{sW}, 3072
        """)

    def w3_base(self, idx, dst):
        if idx < 2:
            return f's_add_u32 {dst}, s37, {(128 + 12*idx) * 1024}'
        if idx < 7:
            return f's_add_u32 {dst}, s37, {(12*idx - 24) * 1024}'
        return (f's_add_u32 s{t0}, s37, {149 * 1024}\ns_cmp_eq_u32 s{sW}, 0\n'
                f's_cselect_b32 {dst}, {60 * 1024}, s{t0}')

    def w3_queue(self):
        q = deque()
        for idx in range(8):
            for u in range(3):
                pre = ''
                if u == 0:
                    pre = f's_add_u32 s{sOFFW}, s36, {idx * 64 * F * 2}\n' + self.w3_base(idx, 'm0') + '\ns_nop 0\n'
                if idx == 7 and u == 2:
                    pre = (f's_add_u32 s{t0}, s37, {149 * 1024}\ns_cmp_eq_u32 s{sW}, 3\n'
                           f's_cselect_b32 s{t0}, {63 * 1024 - 2048}, s{t0}\ns_cmp_eq_u32 s{sW}, 0\n'
                           f's_cselect_b32 m0, {60 * 1024}, s{t0}\ns_nop 0\n')
                q.append(pre + f'buffer_load_dwordx4 v{vD+u}, {srd(S_W3)}, s{sOFFW} offen offset:{u*1024} lds')
        return q

    def p2(self, st1):
        e = self.e
        NPRE = self.o.get('p2_pre', 12)
        self.w3_setup()
        w3q = self.w3_queue()
        self.W3ids = []
        for _ in range(5):
            self.W3ids.append(e(w3q.popleft()))
        self.publish(st1)
        self.stamp()
        for _ in range(7):
            self.W3ids.append(e(w3q.popleft()))
        self.tr16_addr(row_mul=4, base=LDS_B)
        e.wait(self.W2ids[-1])
        e.raw('s_barrier')

        def reads(s):
            return [f'ds_read_b64_tr_b16 {ar((s*4+u)*4+2*m,2)}, v{vA+u} offset:{s*4096+m*2048}'
                    for u in range(4) for m in range(2)]
        last = None
        for s in range(NPRE):
            for ln in reads(s):
                last = e(ln)
        e.wait(last)
        e.raw('s_barrier')
        e(f"""
        v_mov_b32 v44, 0
        v_mov_b32 v45, 0
        v_mov_b32 v46, 0
        v_mov_b32 v47, 0
        v_lshlrev_b32 v40, 4, v{vL}
        v_add_u32 v40, {CS3_LDS}, v40
        s_mov_b32 exec_lo, 0x00ffffff
        s_mov_b32 exec_hi, 0
        ds_write_b128 v40, v[44:47]
        s_mov_b64 exec, -1
        s_lshl_b32 s{t0}, s{sI}, 2
        s_add_u32 s{t0}, s{t0}, s{sW}
        s_lshl_b32 s{t0}, s{t0}, 14
        s_add_u32 s{t0}, s{t0}, {WS_HSH}
        v_lshlrev_b32 v40, 4, v{vL}
        v_add_u32 v{vXO}, s{t0}, v40
        """)
        self.poll()
        self.stamp()
        Xl = [None] * 16
        def xload(s):
            pre = f's_mov_b32 s{sOFF}, {(s//4)*4096}\n' if s % 4 == 0 else ''
            Xl[s] = e(pre + f'buffer_load_dwordx4 {vr(vX+4*s)}, v{vXO}, {srd(S_WS)}, s{sOFF} offen offset:{(s%4)*1024} sc1')
        DIST = 8
        for s in range(DIST):
            xload(s)
        late = deque(ln for s in range(NPRE, 16) for ln in reads(s))
        late_ids = {}
        n_late = (16 - NPRE) * 8
        per = -(-n_late // max(NPRE - 2, 1)) if n_late else 0
        cnt = 0
        for s in range(16):
            e.wait(Xl[s], late_ids.get(s))
            for u in range(4):
                c = '0' if s == 0 else vr(vACC + 4 * u)
                e(f'v_mfma_f32_16x16x32_bf16 {vr(vACC+4*u)}, {ar((s*4+u)*4)}, {vr(vX+4*s)}, {c}')
                for _ in range(-(-per // 4)):
                    if late:
                        step = NPRE + cnt // 8
                        late_ids[step] = e(late.popleft())
                        cnt += 1
            if s + DIST < 16:
                xload(s + DIST)
            elif w3q:
                self.W3ids.append(e(w3q.popleft()))
        self.stamp()
        e.wait(self.resid)
        Y = vACC
        for u in range(4):
            r = vRES + 2 * u
            e(f"""
            v_lshlrev_b32 v40, 16, v{r}
            v_and_b32 v41, s{sMASK}, v{r}
            v_lshlrev_b32 v42, 16, v{r+1}
            v_and_b32 v43, s{sMASK}, v{r+1}
            v_pk_add_f32 {vr(Y+4*u,2)}, {vr(Y+4*u,2)}, v[40:41]
            v_pk_add_f32 {vr(Y+4*u+2,2)}, {vr(Y+4*u+2,2)}, v[42:43]
            """)
            if w3q:
                self.W3ids.append(e(w3q.popleft()))
        assert not w3q
        for p in range(2):
            for uu in range(2):
                u = 2 * p + uu
                e(f'v_cvt_pk_bf16_f32 v{56+4*p+2*uu}, v{Y+4*u}, v{Y+4*u+1}')
                e(f'v_cvt_pk_bf16_f32 v{56+4*p+2*uu+1}, v{Y+4*u+2}, v{Y+4*u+3}')
        e(f"""
        s_lshl_b32 s{t0}, s{sI}, 1
        s_lshr_b32 s{t1}, s{sW}, 1
        s_add_u32 s{t0}, s{t0}, s{t1}
        s_lshl_b32 s{t0}, s{t0}, 15
        s_lshl_b32 s{t1}, s{sJ}, 12
        s_add_u32 s{t0}, s{t0}, s{t1}
        s_and_b32 s{t1}, s{sW}, 1
        s_lshl_b32 s{t1}, s{t1}, 8
        s_add_u32 s{t0}, s{t0}, s{t1}
        s_add_u32 s{t0}, s{t0}, {WS_X1}
        v_lshrrev_b32 v40, 5, v{vL}
        v_lshlrev_b32 v40, 10, v40
        v_bfe_u32 v41, v{vL}, 4, 1
        v_lshl_add_u32 v40, v41, 9, v40
        v_and_b32 v41, 15, v{vL}
        v_lshl_add_u32 v40, v41, 4, v40
        v_add_u32 v{vST}, s{t0}, v40
        """)
        self.both_scopes([f'buffer_store_dwordx4 v[56:59], v{vST}, {srd(S_WS)}, 0 offen',
                          f'buffer_store_dwordx4 v[60:63], v{vST}, {srd(S_WS)}, 0 offen offset:2048'])
        e(f'v_pk_mul_f32 v[42:43], {vr(Y,2)}, {vr(Y,2)}')
        e(f'v_pk_add_f32 v[40:41], {vr(Y,2)}, {vr(Y+2,2)}')
        e(f'v_pk_fma_f32 v[42:43], {vr(Y+2,2)}, {vr(Y+2,2)}, v[42:43]')
        for k in range(2, 8):
            e(f'v_pk_add_f32 v[40:41], v[40:41], {vr(Y+2*k,2)}')
            e(f'v_pk_fma_f32 v[42:43], {vr(Y+2*k,2)}, {vr(Y+2*k,2)}, v[42:43]')
        e('v_add_f32 v40, v40, v41\nv_add_f32 v41, v42, v43')
        e('v_mov_b32 v42, v40\nv_mov_b32 v43, v41')
        e('v_permlane16_swap_b32 v40, v42\nv_permlane16_swap_b32 v41, v43')
        e('v_add_f32 v40, v40, v42\nv_add_f32 v41, v41, v43')
        e('v_mov_b32 v42, v40\nv_mov_b32 v43, v41')
        e('v_permlane32_swap_b32 v40, v42\nv_permlane32_swap_b32 v41, v43')
        e('v_add_f32 v40, v40, v42\nv_add_f32 v41, v41, v43')
        e(f"""
        s_lshl_b32 s{t0}, s{sJ}, 11
        s_lshl_b32 s{t1}, s{sI}, 6
        s_add_u32 s{t0}, s{t0}, s{t1}
        s_lshl_b32 s{t1}, s{sW}, 4
        s_add_u32 s{t0}, s{t0}, s{t1}
        s_lshl_b32 s{t0}, s{t0}, 3
        s_add_u32 s{t0}, s{t0}, {WS_STATS}
        v_and_b32 v44, 15, v{vL}
        v_lshlrev_b32 v44, 3, v44
        v_add_u32 v44, s{t0}, v44
        s_mov_b32 exec_lo, 0xffff
        s_mov_b32 exec_hi, 0
        """)
        st = self.both_scopes([f'buffer_store_dwordx2 v[40:41], v44, {srd(S_WS)}, 0 offen'])
        e.raw('s_mov_b64 exec, -1')
        e(f'v_add_u32 v{vFA}, 256, v{vFA}')
        return st

    def w4_dma_setup(self):
        e = self.e
        e(f"""
        v_lshrrev_b32 v40, 3, v{vL}
        v_and_b32 v41, 7, v{vL}
        v_bfe_u32 v42, v{vL}, 4, 1
        v_lshlrev_b32 v42, 2, v42
        v_xor_b32 v41, v41, v42
        s_lshl_b32 s{t1}, s{sJ}, 7
        v_lshlrev_b32 v40, 10, v40
        v_add_u32 v40, s{t1}, v40
        v_lshl_add_u32 v{vD}, v41, 4, v40
        v_add_u32 v{vD+1}, 7168, v{vD}
        v_add_u32 v{vD+2}, {2*7168}, v{vD}
        v_add_u32 v{vD+3}, {3*7168}, v{vD}
        s_lshr_b32 s38, s{sW}, 1
        s_and_b32 s39, s{sW}, 1
        s_mul_i32 s40, s38, {43*16*1024}
        """)

    def w4_queue(self, pi0, npw, blk0, blk_kh, n_instr=None):
        q = deque()
        n = n_instr if n_instr is not None else 2 * npw
        for g in range(0, n, 4):
            for k in range(min(4, n - g)):
                pre = ''
                if k == 0:
                    pre = (f's_mul_i32 s{t0}, s39, {n * 8192}\n'
                           f's_add_u32 s{t0}, s{t0}, s40\n'
                           f's_add_u32 s{sOFFW}, s{t0}, {pi0*16*1024 + g*8192}\n'
                           f's_mul_i32 s{t0}, s39, {n * 1024}\n'
                           f's_mul_i32 s{t1}, s38, {blk_kh * 1024}\n'
                           f's_add_u32 s{t0}, s{t0}, s{t1}\n'
                           f's_add_u32 m0, s{t0}, {blk0*1024 + g*1024}\ns_nop 0\n')
                q.append(pre + f'buffer_load_dwordx4 v{vD+k}, {srd(S_W4)}, s{sOFFW} offen offset:{k*1024} lds')
        return q

    def load_stats(self, tile_sgpr_expr_dst):
        e = self.e
        e(f"""
        s_lshl_b32 s{t0}, {tile_sgpr_expr_dst}, 8
        s_add_u32 s{t0}, s{t0}, {WS_STATS}
        v_and_b32 v40, 31, v{vL}
        v_lshlrev_b32 v40, 3, v40
        v_lshrrev_b32 v41, 5, v{vL}
        v_lshl_add_u32 v40, v41, 16, v40
        v_add_u32 v40, s{t0}, v40
        """)
        last = None
        for jj in range(4):
            e(f's_mov_b32 s{t1}, {jj*16384}')
            last = e(f'buffer_load_dwordx2 {vr(48+2*jj,2)}, v40, {srd(S_WS)}, s{t1} offen sc1')
        return last

    def reduce_stats(self, mean_out, rstd_out):
        e = self.e
        e('v_pk_add_f32 v[48:49], v[48:49], v[50:51]\nv_pk_add_f32 v[52:53], v[52:53], v[54:55]')
        e('v_pk_add_f32 v[48:49], v[48:49], v[52:53]')
        e('v_mov_b32 v50, v48\nv_mov_b32 v51, v49')
        e('v_permlane32_swap_b32 v48, v50\nv_permlane32_swap_b32 v49, v51')
        e('v_add_f32 v48, v48, v50\nv_add_f32 v49, v49, v51')
        self.finish_stats(48, 49, mean_out, rstd_out)

    def gelu3_list(self, u, out):
        L = []
        for g in range(4):
            U = [vT + k for k in range(4)]
            S = [vT + 4 + k for k in range(4)]
            a = [vACC3 + 16 * u + 4 * g + k for k in range(4)]
            c = [vCS3 + 16 * u + 4 * g + k for k in range(4)]
            L += [f'v_fma_f32 v{U[k]}, v{vMEAN}, v{c[k]}, v{a[k]}' for k in range(4)]
            L += [f'v_mul_f32 v{S[k]}, v{U[k]}, v{U[k]}' for k in range(4)]
            L += [f'v_fma_f32 v{S[k]}, v{S[k]}, v{vGB}, v{vGA}' for k in range(4)]
            L += [f'v_mul_f32 v{S[k]}, v{S[k]}, v{U[k]}' for k in range(4)]
            L += [f'v_exp_f32 v{S[k]}, v{S[k]}' for k in range(4)]
            L += [f'v_add_f32 v{S[k]}, 1.0, v{S[k]}' for k in range(4)]
            L += [f'v_rcp_f32 v{S[k]}, v{S[k]}' for k in range(4)]
            L += [f'v_mul_f32 v{U[k]}, v{U[k]}, v{S[k]}' for k in range(4)]
            L += [f'v_cvt_pk_bf16_f32 v{out+2*g}, v{U[0]}, v{U[1]}', f'v_cvt_pk_bf16_f32 v{out+2*g+1}, v{U[2]}, v{U[3]}']
        return L

    def gelu3_packed(self, u, out, slots):
        e = self.e
        for g in range(2):
            X = [vT + 2 * k for k in range(4)]
            Y = [vT + 8 + 2 * k for k in range(4)]
            a = [vACC3 + 16 * u + 8 * g + 2 * k for k in range(4)]
            c = [vCS3 + 16 * u + 8 * g + 2 * k for k in range(4)]
            for k in range(4):
                e(f'v_pk_fma_f32 {vr(X[k],2)}, {vr(c[k],2)}, {vr(vMEAN,2)}, {vr(a[k],2)} op_sel_hi:[1,0,1]')
            for k in range(4):
                e(f'v_pk_mul_f32 {vr(Y[k],2)}, {vr(X[k],2)}, {vr(X[k],2)}')
            slots()
            for k in range(4):
                e(f'v_pk_fma_f32 {vr(Y[k],2)}, {vr(Y[k],2)}, {vr(vGB,2)}, {vr(vGA,2)} op_sel_hi:[1,0,0]')
            for k in range(4):
                e(f'v_pk_mul_f32 {vr(Y[k],2)}, {vr(Y[k],2)}, {vr(X[k],2)}')
            slots()
            for k in range(4):
                e(f'v_exp_f32 v{Y[k]}, v{Y[k]}\nv_exp_f32 v{Y[k]+1}, v{Y[k]+1}')
            slots()
            for k in range(4):
                e(f'v_pk_add_f32 {vr(Y[k],2)}, {vr(Y[k],2)}, 1.0 op_sel_hi:[1,0]')
            for k in range(4):
                e(f'v_rcp_f32 v{Y[k]}, v{Y[k]}\nv_rcp_f32 v{Y[k]+1}, v{Y[k]+1}')
            slots()
            for k in range(4):
                e(f'v_pk_mul_f32 {vr(X[k],2)}, {vr(X[k],2)}, {vr(Y[k],2)}')
            for k in range(4):
                e(f'v_cvt_pk_bf16_f32 v{out+4*g+k}, v{X[k]}, v{X[k]+1}')

    def tr32_lane(self, dst, row_bytes, u_xor=None):
        e = self.e
        e(f"""
        v_lshrrev_b32 v40, 5, v{vL}
        v_bfe_u32 v41, v{vL}, 2, 2
        """)
        if row_bytes == 64:
            e(f"""
            v_lshl_add_u32 v42, v40, 2, v41
            v_lshlrev_b32 v42, 6, v42
            """)
        else:
            e(f"""
            v_lshl_add_u32 v42, v40, 3, v41
            v_lshlrev_b32 v42, 7, v42
            """)
        e(f"""
        v_bfe_u32 v43, v{vL}, 4, 1
        v_lshl_add_u32 v42, v43, 5, v42
        v_and_b32 v43, 1, v{vL}
        v_lshl_add_u32 v42, v43, 4, v42
        v_bfe_u32 v43, v{vL}, 1, 1
        v_lshl_add_u32 v{dst}, v43, 3, v42
        """)

    def p3(self, st2):
        e = self.e
        self.publish(st2)
        self.stamp()
        self.tr32_lane(vA, 64)
        e(f'v_add_u32 v{vA+1}, {LDS_C}, v{vA}')
        e.wait(self.W3ids[-1])
        e.wait_lg_all()
        e.raw('s_barrier')
        acc = [44, 45, 46]
        rd = {}
        def cs_reads(idx):
            b = vFB + 12 * (idx % 2)
            e(self.w3_base(idx, f's{t2}'))
            e(f'v_add_u32 v{vA+2+idx%2}, s{t2}, v{vA}')
            last = None
            for u in range(3):
                if idx == 7 and u == 2:
                    e(f's_cmp_eq_u32 s{sW}, 3\ns_cselect_b32 s{t2}, {63*1024 - 2048}, s{t2}')
                    e(f'v_add_u32 v{vA+2+idx%2}, s{t2}, v{vA}')
                for m in range(2):
                    last = e(f'ds_read_b64_tr_b16 {vr(b+4*u+2*m,2)}, v{vA+2+idx%2} offset:{u*1024+m*512}')
            return last
        rd[0] = cs_reads(0)
        for idx in range(8):
            if idx + 1 < 8:
                rd[idx + 1] = cs_reads(idx + 1)
            e.wait(rd[idx])
            b = vFB + 12 * (idx % 2)
            for r in range(4):
                for u in range(3):
                    c = '0' if (idx == 0 and r == 0) else f'v{acc[u]}'
                    e(f'v_dot2_f32_bf16 v{acc[u]}, v{b+4*u+r}, v{vONE}, {c}')
        for u in range(3):
            self.xhalf_sum(acc[u], 47)
        e(f"""
        v_and_b32 v40, 31, v{vL}
        v_lshlrev_b32 v40, 2, v40
        v_add_u32 v40, {CS3_LDS}, v40
        s_mov_b32 exec_hi, 0
        """)
        for u in range(3):
            e(f'ds_add_f32 v40, v{acc[u]} offset:{u*128}')
        e.raw('s_mov_b64 exec, -1')
        e.wait_lg_all()
        e.raw('s_barrier')
        e(f"""
        v_lshrrev_b32 v40, 5, v{vL}
        v_lshlrev_b32 v40, 4, v40
        v_add_u32 v40, {CS3_LDS}, v40
        """)
        for u in range(3):
            for qq in range(4):
                e(f'ds_read_b128 {vr(vCS3+16*u+4*qq)}, v40 offset:{u*128+qq*32}')

        def w3rd(sig, u, dst, agpr=False):
            b = w3_block(sig, u)
            va, off = (vA + 1, (b - 128) * 1024) if b >= 128 else (vA, b * 1024)
            f = ar if agpr else vr
            return [f'ds_read_b64_tr_b16 {f(dst+2*m,2)}, v{va} offset:{off+m*512}' for m in range(2)]
        pre = None
        for sig in range(32):
            for ln in w3rd(sig, 2, 128 + 4 * sig, agpr=True):
                pre = e(ln)
        e(f"""
        s_lshl_b32 s41, s{sG}, 2
        s_add_u32 s41, s41, s{sW}
        s_lshl_b32 s{t0}, s41, 15
        s_add_u32 s{t0}, s{t0}, {WS_X1}
        v_lshlrev_b32 v40, 4, v{vL}
        v_add_u32 v{vXO}, s{t0}, v40
        s_lshr_b32 s{t0}, s{sW}, 1
        s_lshl_b32 s{t0}, s{t0}, 5
        s_and_b32 s{t1}, s{sW}, 1
        s_lshl_b32 s{t1}, s{t1}, 4
        s_add_u32 s{t0}, s{t0}, s{t1}
        s_lshl_b32 s{t0}, s{t0}, 2
        s_lshl_b32 s{t1}, s{sG}, 10
        s_add_u32 s{t0}, s{t0}, s{t1}
        s_add_u32 s{t0}, s{t0}, 256
        v_and_b32 v40, 15, v{vL}
        v_lshlrev_b32 v40, 2, v40
        v_add_u32 v{vPA}, s{t0}, v40
        """)
        e.wait(pre)
        self.poll()
        self.stamp()
        stats = self.load_stats('s41')
        Xl = [None] * 32
        def xload(s):
            p = f's_mov_b32 s{sOFF}, {(s//4)*4096}\n' if s % 4 == 0 else ''
            Xl[s] = e(p + f'buffer_load_dwordx4 {ar(4*s)}, v{vXO}, {srd(S_WS)}, s{sOFF} offen offset:{(s%4)*1024} sc1')
        DIST = self.o.get('p3_dist', 10)
        for s in range(DIST):
            xload(s)
        self.w4_dma_setup()
        w4a = self.w4_queue(0, 8, 64, 32)
        self.W4a = []
        rdA = {}
        def fr(sig):
            b = vFB + 8 * (sig % 3)
            last = None
            out = []
            for u in range(2):
                out += w3rd(sig, u, b + 4 * u)
            return out
        for sig in (0, 1):
            for ln in fr(sig):
                rdA[sig] = e(ln)
        e.wait(stats)
        self.reduce_stats(vMEAN, vRSTD)
        e(f"""
        v_mul_f32 v{vGA}, s{sC1}, v{vRSTD}
        v_mul_f32 v40, v{vRSTD}, v{vRSTD}
        v_mul_f32 v40, v40, v{vRSTD}
        v_mul_f32 v{vGB}, s{sC2}, v40
        """)
        for sig in range(32):
            if sig == 16:
                e.raw('s_barrier')
            e.wait(Xl[sig], rdA[sig])
            nxt = deque(fr(sig + 2)) if sig + 2 < 32 else deque()
            b = vFB + 8 * (sig % 3)
            for u in range(2):
                c = '0' if sig == 0 else vr(vACC3 + 16 * u, 16)
                e(f'v_mfma_f32_32x32x16_bf16 {vr(vACC3+16*u,16)}, {vr(b+4*u)}, {ar(4*sig)}, {c}')
                for _ in range(2):
                    if nxt:
                        rdA[sig + 2] = e(nxt.popleft())
            if sig + DIST < 32:
                xload(sig + DIST)
            elif w4a:
                self.W4a.append(e(w4a.popleft()))
        self.stamp()
        gl = deque(self.gelu3_list(0, 56))
        ntot = len(gl)
        for sig in range(32):
            c = '0' if sig == 0 else vr(vACC3 + 32, 16)
            e(f'v_mfma_f32_32x32x16_bf16 {vr(vACC3+32,16)}, {ar(128+4*sig)}, {ar(4*sig)}, {c}')
            want = ntot * (sig + 1) // 32
            while ntot - len(gl) < want:
                e(gl.popleft())
            if sig % 4 == 3 and w4a:
                self.W4a.append(e(w4a.popleft()))
        while w4a:
            self.W4a.append(e(w4a.popleft()))
        e(f"""
        s_mul_i32 s{t0}, s41, {G_TILE}
        s_lshl_b32 s{t1}, s{sU0}, 11
        s_add_u32 s{t0}, s{t0}, s{t1}
        s_add_u32 s{t0}, s{t0}, {WS_G}
        v_lshlrev_b32 v47, 4, v{vL}
        v_add_u32 v{vST}, s{t0}, v47
        s_mov_b32 s42, 4096
        """)
        st = self.both_scopes([f'buffer_store_dwordx4 v[56:59], v{vST}, {srd(S_WS)}, 0 offen',
                               f'buffer_store_dwordx4 v[60:63], v{vST}, {srd(S_WS)}, 0 offen offset:1024'])
        e.wait(self.W4a[-1])
        e.raw('s_barrier')
        self.stamp()
        self.p4_addr()
        l = None
        for pi in range(3):
            for U in range(2):
                for m in range(2):
                    l = e(f'ds_read_b64_tr_b16 {ar(172+(pi*2+U)*4+2*m,2)}, v{vA+U} offset:{pi*2048+m*512}')
        w4b = self.w4_queue(16, 8, 0, 32)
        w4b.extend(self.w4_queue(32, 4, 128, 16))
        self.W4b = []
        def slots():
            if w4b:
                self.W4b.append(e(w4b.popleft()))
        self.gelu3_packed(1, 56, slots)
        st = self.both_scopes([f'buffer_store_dwordx4 v[56:59], v{vST}, {srd(S_WS)}, 0 offen offset:2048',
                               f'buffer_store_dwordx4 v[60:63], v{vST}, {srd(S_WS)}, 0 offen offset:3072'])
        e.wait(l)
        e.raw('s_barrier')
        w4c = self.w4_queue(40, 0, 64, 32, n_instr=3)
        skip = self.lab('nou2')
        self.gelu3_packed(2, 56, slots)
        e.raw(f's_cmp_ge_u32 s{sQ}, 11')
        e.raw(f's_cbranch_scc1 {skip}')
        a, bl = self.lab('slow'), self.lab('done')
        lines = [f'buffer_store_dwordx4 v[56:59], v{vST}, {srd(S_WS)}, s42 offen',
                 f'buffer_store_dwordx4 v[60:63], v{vST}, {srd(S_WS)}, s42 offen offset:1024']
        e.raw(f's_cmp_eq_u32 s{sLOC}, 0\ns_cbranch_scc1 {a}')
        for ln in lines:
            st2 = e.optional_vm(ln)
        e.raw(f's_branch {bl}')
        e.label(a)
        for ln in lines:
            e.raw(ln + ' sc1')
        e.label(bl)
        e.label(skip)
        e(f"""
        s_lshl_b32 s{t0}, s{sW}, 4
        s_add_u32 s{t0}, s{t0}, s{sQ}
        s_lshl_b32 s{t0}, s{t0}, 2
        s_lshl_b32 s{t1}, s{sG}, 10
        s_add_u32 s{t0}, s{t0}, s{t1}
        s_add_u32 s{t0}, s{t0}, 512
        v_mov_b32 v{vFA}, s{t0}
        """)
        self.stamp()
        e.wait(st2)
        self.publish(None)
        while w4b:
            self.W4b.append(e(w4b.popleft()))
        while w4c:
            self.W4b.append(e(w4c.popleft()))

    def p4_addr(self):
        e = self.e
        self.tr32_lane(48, 128)
        e(f"""
        v_bfe_u32 v41, v{vL}, 3, 1
        v_lshlrev_b32 v41, 6, v41
        s_lshr_b32 s{t0}, s{sW}, 1
        s_lshl_b32 s{t1}, s{t0}, 6
        v_xor_b32 v41, s{t1}, v41
        v_add_u32 v42, v48, v41
        v_xor_b32 v41, 64, v41
        v_add_u32 v43, v48, v41
        s_lshl_b32 s{t1}, s{t0}, 15
        s_add_u32 s{t2}, s{t1}, {64*1024}
        v_add_u32 v{vA}, s{t2}, v42
        v_add_u32 v{vA+1}, s{t2}, v43
        v_add_u32 v{vA+2}, s{t1}, v42
        v_add_u32 v{vA+3}, s{t1}, v43
        s_lshl_b32 s{t1}, s{t0}, 14
        s_add_u32 s{t2}, s{t1}, {128*1024}
        v_add_u32 v{vA+4}, s{t2}, v42
        v_add_u32 v{vA+5}, s{t2}, v43
        """)

    def p4(self):
        e = self.e
        e(f"""
        s_and_b32 s{t0}, s{sI}, 1
        s_lshl_b32 s{t0}, s{t0}, 1
        s_and_b32 s{t1}, s{sW}, 1
        s_add_u32 s{t0}, s{t0}, s{t1}
        s_lshl_b32 s43, s{sG}, 2
        s_add_u32 s43, s43, s{t0}
        s_lshl_b32 s{t0}, s{t0}, 6
        s_lshl_b32 s{t1}, s{sG}, 10
        s_add_u32 s{t0}, s{t0}, s{t1}
        s_add_u32 s{t0}, s{t0}, 512
        v_and_b32 v40, 15, v{vL}
        v_lshlrev_b32 v40, 2, v40
        v_add_u32 v{vPA}, s{t0}, v40
        s_mul_i32 s{t0}, s43, {G_TILE}
        s_mul_i32 s{t1}, s38, {43*1024}
        s_add_u32 s{t0}, s{t0}, s{t1}
        s_add_u32 s{t0}, s{t0}, {WS_G}
        v_lshlrev_b32 v40, 4, v{vL}
        v_add_u32 v{vXO}, s{t0}, v40
        """)
        self.poll()
        self.stamp()
        Xl = [None] * 43
        def xload(s):
            p = f's_mov_b32 s{sOFF}, {(s//4)*4096}\n' if s % 4 == 0 else ''
            Xl[s] = e(p + f'buffer_load_dwordx4 {ar(4*s)}, v{vXO}, {srd(S_WS)}, s{sOFF} offen offset:{(s%4)*1024} sc1')
        DIST = self.o.get('p4_dist', 10)
        for s in range(DIST):
            xload(s)

        def fr(pi):
            b = vFB + 8 * (pi % 3)
            if pi < 16:
                va, off = vA, pi * 2048
            elif pi < 32:
                va, off = vA + 2, (pi - 16) * 2048
            elif pi < 40:
                va, off = vA + 4, (pi - 32) * 2048
            else:
                va, off = vA, (pi - 40) * 2048
            return [f'ds_read_b64_tr_b16 {vr(b+4*U+2*m,2)}, v{va+U} offset:{off+m*512}' for U in range(2) for m in range(2)]
        rd = {}
        extra = deque()
        def resid_setup():
            e(f"""
            s_lshl_b32 s{t0}, s43, 15
            s_lshl_b32 s{t1}, s{sJ}, 1
            s_add_u32 s{t1}, s{t1}, s38
            s_lshl_b32 s{t1}, s{t1}, 11
            s_add_u32 s{t0}, s{t0}, s{t1}
            s_add_u32 s{t0}, s{t0}, {WS_X1}
            v_lshrrev_b32 v40, 5, v{vL}
            v_lshlrev_b32 v40, 10, v40
            v_and_b32 v41, 31, v{vL}
            v_lshl_add_u32 v40, v41, 4, v40
            v_add_u32 v47, s{t0}, v40
            """)
        res = stats = None
        for pi in range(43):
            if pi == 1 or pi == 18:
                e.raw('s_barrier')
            if pi >= 3:
                e.wait(Xl[pi], rd[pi])
            else:
                e.wait(Xl[pi])
            nxt = deque(fr(pi + 2)) if (3 <= pi + 2 < 43) else deque()
            b = vFB + 8 * (pi % 3)
            for U in range(2):
                c = '0' if pi == 0 else vr(vACC3 + 16 * U, 16)
                A = ar(172 + (pi * 2 + U) * 4) if pi < 3 else vr(b + 4 * U)
                e(f'v_mfma_f32_32x32x16_bf16 {vr(vACC3+16*U,16)}, {A}, {ar(4*pi)}, {c}')
                for _ in range(2):
                    if nxt:
                        rd[pi + 2] = e(nxt.popleft())
            if pi + DIST < 43:
                xload(pi + DIST)
            elif pi + DIST == 43:
                resid_setup()
                e(f'buffer_load_dwordx4 {vr(vRES)}, v47, {srd(S_WS)}, 0 offen sc1')
            elif pi + DIST == 44:
                res = e(f'buffer_load_dwordx4 {vr(vRES+4)}, v47, {srd(S_WS)}, 0 offen offset:512 sc1')
            elif pi + DIST == 45:
                stats = self.load_stats('s43')
        self.stamp()
        e(f"""
        s_lshl_b32 s{t0}, s{sW}, 12
        s_add_u32 s{t1}, s{t0}, {EXCH_LDS}
        s_xor_b32 s{t0}, s{t0}, 8192
        s_add_u32 s{t0}, s{t0}, {EXCH_LDS}
        v_lshlrev_b32 v40, 4, v{vL}
        v_add_u32 v41, s{t1}, v40
        v_add_u32 v40, s{t0}, v40
        """)
        for z in range(4):
            e(f'ds_write_b128 v41, {vr(vACC3+16+4*z)} offset:{z*1024}')
        e.wait(stats)
        self.reduce_stats(vMEAN, vRSTD)
        e.wait_lg_all()
        e.raw('s_barrier')
        l = None
        for z in range(4):
            l = e(f'ds_read_b128 {vr(vACC3+16+4*z)}, v40 offset:{z*1024}')
        e(f"""
        s_lshl_b32 s{t0}, s43, 15
        s_lshl_b32 s{t1}, s{sJ}, 7
        s_add_u32 s{t0}, s{t0}, s{t1}
        s_lshl_b32 s{t1}, s38, 6
        s_add_u32 s{t0}, s{t0}, s{t1}
        v_and_b32 v44, 31, v{vL}
        v_lshlrev_b32 v44, 10, v44
        v_lshrrev_b32 v45, 5, v{vL}
        v_lshl_add_u32 v44, v45, 4, v44
        v_add_u32 v{vST}, s{t0}, v44
        """)
        e.wait(res)
        src = {0: vRES, 1: vRES + 4, 2: vRES + 2, 3: vRES + 6}
        for g in range(4):
            r = src[g]
            e(f"""
            v_lshlrev_b32 v{96+4*g}, 16, v{r}
            v_and_b32 v{96+4*g+1}, s{sMASK}, v{r}
            v_lshlrev_b32 v{96+4*g+2}, 16, v{r+1}
            v_and_b32 v{96+4*g+3}, s{sMASK}, v{r+1}
            """)
        e.wait(l)
        for k in range(8):
            e(f'v_pk_add_f32 {vr(vACC3+2*k,2)}, {vr(vACC3+2*k,2)}, {vr(vACC3+16+2*k,2)}')
        for k in range(8):
            e(f'v_pk_fma_f32 {vr(vACC3+2*k,2)}, {vr(vACC3+2*k,2)}, {vr(vRSTD,2)}, {vr(96+2*k,2)} op_sel_hi:[1,0,1]')
        for k in range(8):
            e(f'v_cvt_pk_bf16_f32 v{48+k}, v{vACC3+2*k}, v{vACC3+2*k+1}')
        e(f'buffer_store_dwordx4 v[48:51], v{vST}, {srd(S_OUT)}, 0 offen')
        e(f'buffer_store_dwordx4 v[52:55], v{vST}, {srd(S_OUT)}, 0 offen offset:32')
        self.stamp()

    def dump_stamps(self):
        if not self.stamps:
            return
        e = self.e
        e.raw('s_waitcnt vmcnt(0) lgkmcnt(0)')
        e(f"""
        s_lshl_b32 s{t0}, s2, 2
        s_add_u32 s{t0}, s{t0}, s{sW}
        s_lshl_b32 s{t0}, s{t0}, 7
        s_add_u32 s{t0}, s{t0}, {WS_STAMP}
        v_mov_b32 v40, s{t0}
        s_mov_b64 exec, 1
        """)
        e.raw(f's_memtime s[36:37]')
        e.raw('s_waitcnt lgkmcnt(0)')
        for k in range(self.nstamp):
            e(f'v_mov_b32 v41, s{STAMP_REGS[k]}\nbuffer_store_dword v41, v40, {srd(S_WS)}, 0 offen offset:{4*k}')
        e(f'v_mov_b32 v41, s36\nbuffer_store_dword v41, v40, {srd(S_WS)}, 0 offen offset:{4*self.nstamp}')
        e(f'v_mov_b32 v41, s{sLOC}\nbuffer_store_dword v41, v40, {srd(S_WS)}, 0 offen offset:124')

    def build(self):
        e = self.e
        self.prologue()
        st1 = self.p1()
        done = False
        if self.stop_after == 'p1':
            done = True
        if not done:
            st2 = self.p2(st1)
            if self.stop_after == 'p2':
                done = True
        if not done:
            self.p3(st2)
            if self.stop_after == 'p3':
                done = True
        if not done:
            self.p4()
        self.dump_stamps()
        e.label('Lend')
        e.raw('s_endpgm')
        body = e.finalize()
        hdr = open('standalone__mixer_s_mlp__prompt.s.ref').read().split('\n')
        com = [l for l in hdr if l.startswith(';') and '@launch' not in l and 'Override' not in l and 'grid=ceil' not in l][:9]
        text = '\n'.join(com) + '\n'
        text += '; @launch grid=(256,1,1) block=(256,1,1) lds=163840\n'
        text += f'''.amdgcn_target "amdgcn-amd-amdhsa--gfx950"
.text
.globl {KNAME}
.p2align 8
.type {KNAME},@function
{KNAME}:
'''
        text += body
        text += f'''.section .rodata,"a"
.p2align 6
.amdhsa_kernel {KNAME}
  .amdhsa_next_free_vgpr 512
  .amdhsa_next_free_sgpr 102
  .amdhsa_accum_offset 256
  .amdhsa_group_segment_fixed_size 0
  .amdhsa_kernarg_size 64
  .amdhsa_user_sgpr_count 2
  .amdhsa_user_sgpr_kernarg_segment_ptr 1
  .amdhsa_system_sgpr_workgroup_id_x 1
  .amdhsa_float_denorm_mode_32 3
.end_amdhsa_kernel
'''
        return text

if __name__ == '__main__':
    import argparse
    ap = argparse.ArgumentParser()
    ap.add_argument('out')
    ap.add_argument('--stamps', action='store_true')
    ap.add_argument('--stop')
    ap.add_argument('--slow', action='store_true')
    a = ap.parse_args()
    g = Gen(stamps=a.stamps, stop_after=a.stop, force_slow=a.slow)
    t = g.build()
    open(a.out, 'w').write(t)
    print('wrote', a.out, len(t), 'bytes of text;', 'nops inserted:', g.e.nops_inserted)
```

```python
import sys, math, struct
from collections import deque
from emit import Emitter

KNAME = "standalone__mixer_s_mlp__prompt_kernel"
T, D, F = 2048, 512, 1376

WS_FLAGS = 0x0
WS_STATS = 0x10000
WS_HSH   = 0x100000
WS_X1    = 0x300000
WS_G     = 0x500000
WS_STAMP = 0xB00000
WS_SIZE  = 0xC00000
G_TILE = 86 * 1024

def f32bits(x):
    return struct.unpack('<I', struct.pack('<f', x))[0]

C1 = -2.0 * math.sqrt(2.0 / math.pi) * math.log2(math.e)
C2 = C1 * 0.044715
EPS = 1e-5

S_X, S_W1, S_W2, S_W3, S_W4, S_OUT, S_WS, S_DBG = 4, 8, 12, 16, 20, 24, 28, 32
S_PTR = 36
sG, sQ, sI, sJ, sW, sLOC, sU0 = 52, 53, 54, 55, 56, 57, 58
t0, t1, t2, t3, t4, t5 = 59, 60, 61, 62, 63, 64
sM1, sM2, sM3, sMD = 66, 68, 70, 72
sC1, sC2 = 74, 76
sOFF, sOFFW, sSPIN, sMASK = 78, 79, 80, 81
STAMP_REGS = [82 + 2 * k for k in range(8)] + [44, 46, 48, 50] + [8, 10, 12, 14, 4, 6]
NSTAMP = len(STAMP_REGS)

LDS_B = 64 * 1024
LDS_C = 128 * 1024
CS1_LDS = 159 * 1024
CS3_LDS = LDS_B
EXCH_LDS = 72 * 1024

def srd(n):
    return f's[{n}:{n+3}]'

def vr(b, n=4):
    return f'v[{b}:{b+n-1}]'

def ar(b, n=4):
    return f'a[{b}:{b+n-1}]'

def w3_block(sig, u):
    if sig < 8:
        return 128 + 3 * sig + u
    if sig < 29:
        return 3 * (sig - 8) + u
    b = 152 + 3 * (sig - 29) + u
    return 63 if b == 160 else b

vL = 1
vD = 4
vA = 8
vXO = 14
vST = 15
vRES = 16
vONE = 24
vPV, vPA, vFA = 28, 29, 30
vMEAN, vRSTD, vC1 = 32, 34, 36
vGA, vGB = 38, 2
vT = 40
vX = 64
vACC = 128
vACS, vASUM, vAQ = 144, 148, 152
vFB = 160
vCB = 208
vCS = 220
vACC3 = 64
vCS3 = 112


class Gen:
    def __init__(self, stamps=False, stop_after=None, **opts):
        self.e = Emitter()
        self.stamps = stamps
        self.stop_after = stop_after
        self.o = opts
        self.nstamp = 0
        self.uid = 0

    def lab(self, base):
        self.uid += 1
        return f'L{base}{self.uid}'

    def stamp(self):
        if self.stamps:
            k = self.nstamp
            assert k < NSTAMP
            self.e.raw(f's_memtime s[{STAMP_REGS[k]}:{STAMP_REGS[k]+1}]')
            self.nstamp += 1

    def both_scopes(self, lines):
        e = self.e
        a, b = self.lab('slow'), self.lab('done')
        e.raw(f's_cmp_eq_u32 s{sLOC}, 0')
        e.raw(f's_cbranch_scc1 {a}')
        last = None
        for ln in lines:
            last = e(ln)
        e.raw(f's_branch {b}')
        e.label(a)
        for ln in lines:
            e.raw(ln + ' sc1')
        e.label(b)
        return last

    def publish(self, store_id):
        e = self.e
        e.wait(store_id)
        e(f'v_mov_b32 v{vPV}, 1')
        e.raw('s_mov_b64 exec, 1')
        self.both_scopes([f'buffer_store_dword v{vPV}, v{vFA}, {srd(S_WS)}, 0 offen'])
        e.raw('s_mov_b64 exec, -1')

    def poll(self):
        e = self.e
        lp, ok, ns = self.lab('poll'), self.lab('pollok'), self.lab('nosleep')
        e.raw(f's_mov_b32 s{sSPIN}, 0')
        e.label(lp)
        e.raw(f'buffer_load_dword v{vPV}, v{vPA}, {srd(S_WS)}, 0 offen sc1')
        e.raw(f's_add_u32 s{sSPIN}, s{sSPIN}, 1')
        e.raw(f's_cmp_gt_u32 s{sSPIN}, 0x40000')
        e.raw(f's_cbranch_scc1 {ok}')
        e.raw('s_waitcnt vmcnt(0)')
        e.raw(f'v_cmp_ne_u32 vcc, 1, v{vPV}')
        e.raw(f's_cbranch_vccz {ok}')
        e.raw(f's_cmp_lg_u32 s{sLOC}, 0')
        e.raw(f's_cbranch_scc1 {lp}')
        e.raw('s_sleep 8')
        e.raw(f's_branch {lp}')
        e.label(ok)
        e.raw('s_waitcnt vmcnt(0)')
        e.forget_vm()

    def gelu_pairs_packed(self, pairs, scale_in=True):
        e = self.e
        n = len(pairs)
        assert n <= 4
        X = [vT + 2 * k for k in range(n)]
        Y = [vT + 8 + 2 * k for k in range(n)]
        for k, (a, c, o) in enumerate(pairs):
            e(f'v_pk_fma_f32 {vr(X[k],2)}, {vr(c,2)}, {vr(vMEAN,2)}, {vr(a,2)} op_sel_hi:[1,0,1]')
        for k in range(n):
            e(f'v_pk_mul_f32 {vr(X[k],2)}, {vr(X[k],2)}, {vr(vRSTD,2)} op_sel_hi:[1,0]')
        for k in range(n):
            e(f'v_pk_mul_f32 {vr(Y[k],2)}, {vr(X[k],2)}, {vr(X[k],2)}')
        for k in range(n):
            e(f'v_pk_fma_f32 {vr(Y[k],2)}, {vr(Y[k],2)}, s[{sC2}:{sC2+1}], {vr(vC1,2)}')
        for k in range(n):
            e(f'v_pk_mul_f32 {vr(Y[k],2)}, {vr(Y[k],2)}, {vr(X[k],2)}')
        for k in range(n):
            e(f'v_exp_f32 v{Y[k]}, v{Y[k]}\nv_exp_f32 v{Y[k]+1}, v{Y[k]+1}')
        for k in range(n):
            e(f'v_pk_add_f32 {vr(Y[k],2)}, {vr(Y[k],2)}, 1.0 op_sel_hi:[1,0]')
        for k in range(n):
            e(f'v_rcp_f32 v{Y[k]}, v{Y[k]}\nv_rcp_f32 v{Y[k]+1}, v{Y[k]+1}')
        for k in range(n):
            e(f'v_pk_mul_f32 {vr(X[k],2)}, {vr(X[k],2)}, {vr(Y[k],2)}')
        for k, (a, c, o) in enumerate(pairs):
            e(f'v_cvt_pk_bf16_f32 v{o}, v{X[k]}, v{X[k]+1}')

    def xgroup_sum(self, r, tmp):
        e = self.e
        e(f'v_mov_b32 v{tmp}, v{r}')
        e(f'v_permlane16_swap_b32 v{r}, v{tmp}')
        e(f'v_add_f32 v{r}, v{r}, v{tmp}')
        self.xhalf_sum(r, tmp)

    def xhalf_sum(self, r, tmp):
        e = self.e
        e(f'v_mov_b32 v{tmp}, v{r}')
        e(f'v_permlane32_swap_b32 v{r}, v{tmp}')
        e(f'v_add_f32 v{r}, v{r}, v{tmp}')

    def finish_stats(self, rs, rq, mean_out, rstd_out):
        e = self.e
        e(f'v_mul_f32 v{rs}, {f32bits(1.0/D):#x}, v{rs}')
        e(f'v_mul_f32 v{rq}, {f32bits(1.0/D):#x}, v{rq}')
        e(f'v_fma_f32 v{rq}, -v{rs}, v{rs}, v{rq}')
        e(f'v_max_f32 v{rq}, 0, v{rq}')
        e(f'v_add_f32 v{rq}, {f32bits(EPS):#x}, v{rq}')
        e(f'v_rsq_f32 v{rstd_out}, v{rq}')
        e(f'v_sub_f32 v{mean_out}, 0, v{rs}')

    def prologue(self):
        e = self.e
        e(f"""
        s_cmp_ge_u32 s2, 256
        s_cbranch_scc1 Lend
        s_load_dwordx16 s[{S_PTR}:{S_PTR+15}], s[0:1], 0
        v_lshrrev_b32 v2, 6, v0
        v_and_b32 v{vL}, 63, v0
        s_and_b32 s{t0}, s2, 7
        v_readfirstlane_b32 s{sW}, v2
        s_lshr_b32 s{t1}, s2, 3
        s_and_b32 s{t1}, s{t1}, 1
        s_lshl_b32 s{sG}, s{t0}, 1
        s_add_u32 s{sG}, s{sG}, s{t1}
        s_lshr_b32 s{sQ}, s2, 4
        s_lshr_b32 s{sI}, s{sQ}, 3
        s_lshl_b32 s{t0}, s{sG}, 1
        s_add_u32 s{sI}, s{sI}, s{t0}
        s_and_b32 s{sJ}, s{sQ}, 7
        s_mul_i32 s{sU0}, s{sQ}, 3
        s_sub_i32 s{t0}, s{sQ}, 11
        s_max_i32 s{t0}, s{t0}, 0
        s_sub_u32 s{sU0}, s{sU0}, s{t0}
        s_mov_b32 s{sC1}, {f32bits(C1):#x}
        s_mov_b32 s{sC1+1}, {f32bits(C1):#x}
        s_mov_b32 s{sC2}, {f32bits(C2):#x}
        s_mov_b32 s{sC2+1}, {f32bits(C2):#x}
        s_mov_b32 s{sMASK}, 0xffff0000
        s_mov_b32 s{sLOC}, 0
        """)
        self.stamp()
        if self.stamps:
            e.raw('s_memrealtime s[98:99]')
        sizes = [(S_X, 0, T * D * 2), (S_W1, 1, D * D * 2), (S_W2, 2, D * D * 2), (S_W3, 3, D * F * 2 + 2048),
                 (S_W4, 4, F * D * 2), (S_OUT, 5, T * D * 2), (S_DBG, 6, 256), (S_WS, 7, WS_SIZE)]
        for (s, k, size) in sizes:
            e(f's_mov_b32 s{s+2}, {size:#x}\ns_mov_b32 s{s+3}, 0x20000')
        e(f"""
        s_lshr_b32 s{t0}, s{sJ}, 2
        s_add_u32 s{t0}, s{t0}, 1
        s_sub_i32 s{t1}, 0, s{t0}
        s_bitcmp1_b32 s{sJ}, 1
        s_cselect_b32 s{t0}, s{t0}, s{t1}
        s_lshl_b32 s{t1}, s{sI}, 6
        s_lshl_b32 s{t2}, s{sW}, 4
        s_add_u32 s{t1}, s{t1}, s{t2}
        s_add_i32 s{t0}, s{t0}, s{t1}
        """)
        e(f"""
        v_and_b32 v2, 15, v{vL}
        v_lshrrev_b32 v3, 4, v{vL}
        v_add_u32 v40, s{t0}, v2
        v_lshlrev_b32 v41, 10, v40
        v_lshl_add_u32 v41, v3, 4, v41
        v_cmp_gt_u32 vcc, {T}, v40
        v_mov_b32 v42, 0x40000000
        v_cndmask_b32 v{vXO}, v42, v41, vcc
        v_lshrrev_b32 v40, 3, v{vL}
        v_and_b32 v41, 7, v{vL}
        v_and_b32 v42, 1, v3
        v_lshlrev_b32 v42, 1, v42
        v_xor_b32 v41, v41, v42
        s_lshl_b32 s{t1}, s{sJ}, 7
        v_lshlrev_b32 v40, 10, v40
        v_add_u32 v40, s{t1}, v40
        v_lshl_add_u32 v{vD}, v41, 4, v40
        v_xor_b32 v41, 4, v41
        v_lshl_add_u32 v{vD+1}, v41, 4, v40
        v_add_u32 v{vD+2}, {2*7168}, v{vD}
        v_add_u32 v{vD+3}, {2*7168}, v{vD+1}
        v_add_u32 v{vD+3}, 7168, v{vD+3}
        v_add_u32 v{vD+1}, 7168, v{vD+1}
        """)
        self.tr16_addr(row_mul=8, base=0, with_w=True)
        e(f"""
        v_and_b32 v40, 3, v{vL}
        v_cmp_eq_u32 s[{sM1}:{sM1+1}], 1, v40
        v_cmp_eq_u32 s[{sM2}:{sM2+1}], 2, v40
        v_cmp_eq_u32 s[{sM3}:{sM3+1}], 3, v40
        v_bfe_u32 v41, v{vL}, 2, 2
        v_cmp_eq_u32 s[{sMD}:{sMD+1}], v3, v41
        v_mov_b32 v{vONE}, 0x3f803f80
        v_mov_b32 v{vONE+1}, 0x3f803f80
        v_mov_b32 v{vONE+2}, 0x3f803f80
        v_mov_b32 v{vONE+3}, 0x3f803f80
        v_mov_b32 v{vC1}, s{sC1}
        v_mov_b32 v{vC1+1}, s{sC1}
        """)
        e.raw('s_waitcnt lgkmcnt(0)')
        for (s, k, size) in sizes:
            p = S_PTR + 2 * k
            if s == S_W3:
                e(f's_sub_u32 s{s}, s{p}, 2048\ns_subb_u32 s{s+1}, s{p+1}, 0')
            else:
                e(f's_mov_b32 s{s}, s{p}\ns_mov_b32 s{s+1}, s{p+1}')
        skip = self.lab('nozero')
        e(f"""
        s_or_b32 s{t0}, s{sQ}, s{sW}
        s_cmp_lg_u32 s{t0}, 0
        s_cbranch_scc1 {skip}
        s_lshl_b32 s{t0}, s{sG}, 10
        v_lshlrev_b32 v40, 4, v{vL}
        v_add_u32 v40, s{t0}, v40
        v_mov_b32 v44, 0
        v_mov_b32 v45, 0
        v_mov_b32 v46, 0
        v_mov_b32 v47, 0
        """)
        e.optional_vm(f'buffer_store_dwordx4 v[44:47], v40, {srd(S_WS)}, 0 offen sc1')
        e.label(skip)

    def tr16_addr(self, row_mul, base, with_w=False):
        e = self.e
        e(f"""
        v_lshrrev_b32 v40, 4, v{vL}
        v_bfe_u32 v41, v{vL}, 2, 2
        v_mul_u32_u24 v42, {row_mul}, v40
        v_add_u32 v42, v42, v41
        v_lshlrev_b32 v42, 7, v42
        v_bfe_u32 v43, v{vL}, 1, 1
        v_lshl_add_u32 v42, v43, 4, v42
        v_and_b32 v43, 1, v{vL}
        v_lshl_add_u32 v42, v43, 3, v42
        v_lshrrev_b32 v41, 1, v41
        v_and_b32 v40, 1, v40
        v_lshlrev_b32 v40, 1, v40
        v_or_b32 v40, v40, v41
        v_lshlrev_b32 v40, 5, v40
        """)
        if base:
            e(f'v_add_u32 v42, {base}, v42')
        for u in range(4):
            e(f'v_xor_b32 v41, {32*u}, v40\nv_add_u32 v{vA+u}, v41, v42')
        if with_w:
            e(f's_lshl_b32 s{t1}, s{sW}, 5\nv_xor_b32 v41, s{t1}, v40\nv_add_u32 v{vA+4}, v41, v42')

    def p1(self):
        e = self.e
        Wc, Xl = [None] * 4, [None] * 16
        e(f's_lshl_b32 s{t2}, s{sW}, 15\ns_lshl_b32 s{t3}, s{sW}, 12')
        for c in range(4):
            e(f's_add_u32 s{sOFFW}, s{t2}, {c*131072}\ns_add_u32 m0, s{t3}, {c*16384}')
            for k in range(4):
                Wc[c] = e(f'buffer_load_dwordx4 v{vD+k}, {srd(S_W1)}, s{sOFFW} offen offset:{k*1024} lds')
            for s in range(4 * c, 4 * c + 4):
                Xl[s] = e(f'buffer_load_dwordx4 {vr(vX+4*s)}, v{vXO}, {srd(S_X)}, 0 offen offset:{s*64}')
        e(f"""
        v_lshrrev_b32 v40, 3, v{vL}
        v_and_b32 v41, 7, v{vL}
        v_and_b32 v42, 6, v40
        v_xor_b32 v41, v41, v42
        s_lshl_b32 s{t1}, s{sJ}, 7
        v_lshlrev_b32 v40, 10, v40
        v_add_u32 v40, s{t1}, v40
        v_lshl_add_u32 v48, v41, 4, v40
        v_add_u32 v49, 7168, v48
        v_add_u32 v50, {2*7168}, v48
        v_add_u32 v51, {3*7168}, v48
        s_lshl_b32 s{t4}, s{sW}, 17
        s_lshl_b32 s{t5}, s{sW}, 14
        """)
        self.W2ids = []
        w2q = deque()
        for g in range(4):
            for k in range(4):
                pre = f's_add_u32 s{sOFFW}, s{t4}, {g*32768}\ns_add_u32 m0, s{t5}, {LDS_B + g*4096}\ns_nop 0\n' if k == 0 else ''
                w2q.append(pre + f'buffer_load_dwordx4 v{48+k}, {srd(S_W2)}, s{sOFFW} offen offset:{k*1024} lds')

        def reads(s):
            b = vFB + 16 * (s % 3)
            out = []
            for u in range(4):
                for m in range(2):
                    out.append(f'ds_read_b64_tr_b16 {vr(b+4*u+2*m,2)}, v{vA+u} offset:{s*4096+m*512}')
            cb = vCB + 4 * (s % 3)
            for m in range(2):
                out.append(f'ds_read_b64_tr_b16 {vr(cb+2*m,2)}, v{vA+4} offset:{s*4096+m*512}')
            return out

        rd = {}
        e.wait(Wc[0])
        e.raw('s_barrier')
        self.stamp()
        skip = self.lab('nodbg')
        e(f"""
        s_cmp_lg_u32 s{sW}, 0
        s_cbranch_scc1 {skip}
        s_getreg_b32 s{t0}, hwreg(HW_REG_XCC_ID, 0, 4)
        s_or_b32 s{t0}, s{t0}, 0x80
        s_lshl_b32 s{t1}, s{sG}, 4
        s_add_u32 s{t1}, s{t1}, s{sQ}
        v_mov_b32 v40, s{t0}
        v_mov_b32 v41, s{t1}
        s_mov_b64 exec, 1
        """)
        e.optional_vm(f'buffer_store_byte v40, v41, {srd(S_DBG)}, 0 offen sc1')
        e.raw('s_mov_b64 exec, -1')
        e.label(skip)
        for s in (0, 1):
            for ln in reads(s):
                rd[s] = e(ln)
        for s in range(16):
            if s + 2 < 16 and (s + 2) % 4 == 0:
                e.wait(Wc[(s + 2) // 4])
                e.raw('s_barrier')
            e.wait(Xl[s], rd[s])
            nxt = deque(reads(s + 2)) if s + 2 < 16 else deque()
            b = vFB + 16 * (s % 3)
            cb = vCB + 4 * (s % 3)
            xb = vr(vX + 4 * s)
            C = lambda r: ('0' if s == 0 else vr(r))
            mf = [f'v_mfma_f32_16x16x32_bf16 {vr(vACC+4*u)}, {vr(b+4*u)}, {xb}, {C(vACC+4*u)}' for u in range(4)]
            mf.append(f'v_mfma_f32_16x16x32_bf16 {vr(vAQ)}, {xb}, {xb}, {C(vAQ)}')
            mf.append(f'v_mfma_f32_16x16x32_bf16 {vr(vASUM)}, {vr(vONE)}, {xb}, {C(vASUM)}')
            mf.append(f'v_mfma_f32_16x16x32_bf16 {vr(vACS)}, {vr(cb)}, {vr(vONE)}, {C(vACS)}')
            for k, m in enumerate(mf):
                e(m)
                for _ in range(2 if k < 3 else 1):
                    if nxt:
                        rd[s + 2] = e(nxt.popleft())
            while nxt:
                rd[s + 2] = e(nxt.popleft())
            if w2q:
                self.W2ids.append(e(w2q.popleft()))
        self.stamp()
        e(f"""
        s_lshl_b32 s{t0}, s{sI}, 6
        s_lshl_b32 s{t1}, s{sW}, 4
        s_add_u32 s{t0}, s{t0}, s{t1}
        v_and_b32 v40, 15, v{vL}
        v_add_u32 v40, s{t0}, v40
        v_lshlrev_b32 v40, 10, v40
        v_lshrrev_b32 v41, 4, v{vL}
        v_lshl_add_u32 v40, v41, 3, v40
        s_lshl_b32 s{t1}, s{sJ}, 7
        v_add_u32 v40, s{t1}, v40
        s_lshl_b32 s{t1}, s{sG}, 4
        v_mov_b32 v31, s{t1}
        """)
        dbg = e(f'buffer_load_dwordx4 v[236:239], v31, {srd(S_DBG)}, 0 offen sc1')
        self.resid = None
        for u in range(4):
            self.resid = e(f'buffer_load_dwordx2 {vr(vRES+2*u,2)}, v40, {srd(S_X)}, 0 offen offset:{u*32}')
        e(f"""
        v_lshrrev_b32 v40, 4, v{vL}
        v_lshlrev_b32 v40, 4, v40
        s_lshl_b32 s{t0}, s{sW}, 6
        s_add_u32 s{t0}, s{t0}, {CS1_LDS}
        v_add_u32 v41, s{t0}, v40
        v_add_u32 v40, {CS1_LDS}, v40
        s_mov_b32 exec_lo, 0x00010001
        s_mov_b32 exec_hi, 0x00010001
        """)
        e(f'ds_write_b128 v41, {vr(vACS)}')
        e.raw('s_mov_b64 exec, -1')
        e.wait_lg_all()
        e.raw('s_barrier')
        csr = None
        for u in range(4):
            csr = e(f'ds_read_b128 {vr(vCS+4*u)}, v40 offset:{u*64}')
        e(f"""
        v_cndmask_b32 v42, v{vAQ}, v{vAQ+1}, s[{sM1}:{sM1+1}]
        v_cndmask_b32 v42, v42, v{vAQ+2}, s[{sM2}:{sM2+1}]
        v_cndmask_b32 v42, v42, v{vAQ+3}, s[{sM3}:{sM3+1}]
        v_cndmask_b32 v42, 0, v42, s[{sMD}:{sMD+1}]
        """)
        self.xgroup_sum(42, 43)
        e(f'v_mov_b32 v44, v{vASUM}')
        self.finish_stats(44, 42, vMEAN, vRSTD)
        e.wait(csr)
        outs = [56, 57, 58, 59, 60, 61, 62, 63]
        for p in range(2):
            prs = []
            for uu in range(2):
                u = 2 * p + uu
                for h in range(2):
                    prs.append((vACC + 4 * u + 2 * h, vCS + 4 * u + 2 * h, outs[4 * p + 2 * uu + h]))
            self.gelu_pairs_packed(prs)
        self.stamp()
        self.group_check(dbg)
        e(f"""
        s_lshl_b32 s{t0}, s{sI}, 2
        s_add_u32 s{t0}, s{t0}, s{sW}
        s_lshl_b32 s{t0}, s{t0}, 4
        s_lshl_b32 s{t1}, s{sJ}, 1
        s_add_u32 s{t0}, s{t0}, s{t1}
        s_lshl_b32 s{t0}, s{t0}, 10
        s_add_u32 s{t0}, s{t0}, {WS_HSH}
        v_lshlrev_b32 v40, 4, v{vL}
        v_add_u32 v{vST}, s{t0}, v40
        """)
        st = self.both_scopes([f'buffer_store_dwordx4 v[56:59], v{vST}, {srd(S_WS)}, 0 offen',
                               f'buffer_store_dwordx4 v[60:63], v{vST}, {srd(S_WS)}, 0 offen offset:1024'])
        e(f"""
        s_and_b32 s{t0}, s{sI}, 1
        s_lshl_b32 s{t0}, s{t0}, 5
        s_lshl_b32 s{t1}, s{sW}, 3
        s_add_u32 s{t0}, s{t0}, s{t1}
        s_add_u32 s{t1}, s{t0}, s{sJ}
        s_lshl_b32 s{t1}, s{t1}, 2
        s_lshl_b32 s{t2}, s{sG}, 10
        s_add_u32 s{t1}, s{t1}, s{t2}
        v_mov_b32 v{vFA}, s{t1}
        s_lshl_b32 s{t0}, s{t0}, 2
        s_add_u32 s{t0}, s{t0}, s{t2}
        v_and_b32 v40, 7, v{vL}
        v_lshlrev_b32 v40, 2, v40
        v_add_u32 v{vPA}, s{t0}, v40
        """)
        return st

    def group_check(self, dbg):
        e = self.e
        lp, ok, again = self.lab('grp'), self.lab('grpok'), self.lab('grpagain')
        e.wait(dbg)
        e.raw(f's_mov_b32 s{sSPIN}, 0')
        e.label(lp)
        e(f"""
        v_readfirstlane_b32 s{t0}, v236
        v_readfirstlane_b32 s{t1}, v237
        v_readfirstlane_b32 s{t2}, v238
        v_readfirstlane_b32 s{t3}, v239
        s_nop 3
        s_and_b32 s{t4}, s{t0}, s{t1}
        s_and_b32 s{t5}, s{t2}, s{t3}
        s_and_b32 s{t4}, s{t4}, s{t5}
        s_and_b32 s{t4}, s{t4}, 0x80808080
        s_cmp_eq_u32 s{t4}, 0x80808080
        s_cbranch_scc1 {ok}
        s_add_u32 s{sSPIN}, s{sSPIN}, 1
        s_cmp_gt_u32 s{sSPIN}, 0x40000
        s_cbranch_scc1 {ok}
        s_sleep 4
        """)
        e.raw(f'buffer_load_dwordx4 v[236:239], v31, {srd(S_DBG)}, 0 offen sc1')
        e.raw('s_waitcnt vmcnt(0)')
        e.raw(f's_branch {lp}')
        e.label(ok)
        e(f"""
        s_xor_b32 s{t1}, s{t1}, s{t0}
        s_xor_b32 s{t2}, s{t2}, s{t0}
        s_xor_b32 s{t3}, s{t3}, s{t0}
        s_or_b32 s{t1}, s{t1}, s{t2}
        s_or_b32 s{t1}, s{t1}, s{t3}
        s_lshr_b32 s{t2}, s{t0}, 8
        s_xor_b32 s{t2}, s{t2}, s{t0}
        s_and_b32 s{t2}, s{t2}, 0xffffff
        s_or_b32 s{t1}, s{t1}, s{t2}
        s_cmp_eq_u32 s{t1}, 0
        s_cselect_b32 s{sLOC}, 1, 0
        """)
        if self.o.get('force_slow'):
            e(f's_mov_b32 s{sLOC}, 0')

    def w3_setup(self):
        e = self.e
        e(f"""
        v_lshrrev_b32 v40, 2, v{vL}
        v_and_b32 v41, 7, v40
        v_lshrrev_b32 v40, 3, v40
        v_lshl_add_u32 v40, v40, 4, v41
        v_mul_u32_u24 v40, {F*2}, v40
        v_and_b32 v41, 3, v{vL}
        v_lshl_add_u32 v40, v41, 4, v40
        v_add_u32 v{vD}, 2048, v40
        v_add_u32 v{vD+1}, {2048 + 64 - 1024}, v40
        v_add_u32 v{vD+2}, {2048 + 128 - 2048}, v40
        s_lshr_b32 s{t0}, s{sW}, 1
        s_lshl_b32 s{t0}, s{t0}, 5
        s_and_b32 s{t1}, s{sW}, 1
        s_lshl_b32 s{t1}, s{t1}, 3
        s_add_u32 s{t0}, s{t0}, s{t1}
        s_mul_i32 s{t0}, s{t0}, {F*2}
        s_lshl_b32 s{t1}, s{sU0}, 6
        s_add_u32 s36, s{t0}, s{t1}
        s_mul_i32 s37, s{sW}, 3072
        """)

    def w3_base(self, idx, dst):
        if idx < 2:
            return f's_add_u32 {dst}, s37, {(128 + 12*idx) * 1024}'
        if idx < 7:
            return f's_add_u32 {dst}, s37, {(12*idx - 24) * 1024}'
        return (f's_add_u32 s{t0}, s37, {149 * 1024}\ns_cmp_eq_u32 s{sW}, 0\n'
                f's_cselect_b32 {dst}, {60 * 1024}, s{t0}')

    def w3_queue(self):
        q = deque()
        for idx in range(8):
            for u in range(3):
                pre = ''
                if u == 0:
                    pre = f's_add_u32 s{sOFFW}, s36, {idx * 64 * F * 2}\n' + self.w3_base(idx, 'm0') + '\ns_nop 0\n'
                if idx == 7 and u == 2:
                    pre = (f's_add_u32 s{t0}, s37, {149 * 1024}\ns_cmp_eq_u32 s{sW}, 3\n'
                           f's_cselect_b32 s{t0}, {63 * 1024 - 2048}, s{t0}\ns_cmp_eq_u32 s{sW}, 0\n'
                           f's_cselect_b32 m0, {60 * 1024}, s{t0}\ns_nop 0\n')
                q.append(pre + f'buffer_load_dwordx4 v{vD+u}, {srd(S_W3)}, s{sOFFW} offen offset:{u*1024} lds')
        return q

    def p2(self, st1):
        e = self.e
        NPRE = self.o.get('p2_pre', 12)
        self.w3_setup()
        w3q = self.w3_queue()
        self.W3ids = []
        for _ in range(5):
            self.W3ids.append(e(w3q.popleft()))
        self.publish(st1)
        self.stamp()
        for _ in range(7):
            self.W3ids.append(e(w3q.popleft()))
        self.tr16_addr(row_mul=4, base=LDS_B)
        e.wait(self.W2ids[-1])
        e.raw('s_barrier')

        def reads(s):
            return [f'ds_read_b64_tr_b16 {ar((s*4+u)*4+2*m,2)}, v{vA+u} offset:{s*4096+m*2048}'
                    for u in range(4) for m in range(2)]
        last = None
        for s in range(NPRE):
            for ln in reads(s):
                last = e(ln)
        e.wait(last)
        e.raw('s_barrier')
        e(f"""
        v_mov_b32 v44, 0
        v_mov_b32 v45, 0
        v_mov_b32 v46, 0
        v_mov_b32 v47, 0
        v_lshlrev_b32 v40, 4, v{vL}
        v_add_u32 v40, {CS3_LDS}, v40
        s_mov_b32 exec_lo, 0x00ffffff
        s_mov_b32 exec_hi, 0
        ds_write_b128 v40, v[44:47]
        s_mov_b64 exec, -1
        s_lshl_b32 s{t0}, s{sI}, 2
        s_add_u32 s{t0}, s{t0}, s{sW}
        s_lshl_b32 s{t0}, s{t0}, 14
        s_add_u32 s{t0}, s{t0}, {WS_HSH}
        v_lshlrev_b32 v40, 4, v{vL}
        v_add_u32 v{vXO}, s{t0}, v40
        """)
        self.poll()
        self.stamp()
        Xl = [None] * 16
        def xload(s):
            pre = f's_mov_b32 s{sOFF}, {(s//4)*4096}\n' if s % 4 == 0 else ''
            Xl[s] = e(pre + f'buffer_load_dwordx4 {vr(vX+4*s)}, v{vXO}, {srd(S_WS)}, s{sOFF} offen offset:{(s%4)*1024} sc1')
        DIST = 8
        for s in range(DIST):
            xload(s)
        late = deque(ln for s in range(NPRE, 16) for ln in reads(s))
        late_ids = {}
        n_late = (16 - NPRE) * 8
        per = -(-n_late // max(NPRE - 2, 1)) if n_late else 0
        cnt = 0
        for s in range(16):
            e.wait(Xl[s], late_ids.get(s))
            for u in range(4):
                c = '0' if s == 0 else vr(vACC + 4 * u)
                e(f'v_mfma_f32_16x16x32_bf16 {vr(vACC+4*u)}, {ar((s*4+u)*4)}, {vr(vX+4*s)}, {c}')
                for _ in range(-(-per // 4)):
                    if late:
                        step = NPRE + cnt // 8
                        late_ids[step] = e(late.popleft())
                        cnt += 1
            if s + DIST < 16:
                xload(s + DIST)
            elif w3q:
                self.W3ids.append(e(w3q.popleft()))
        self.stamp()
        e.wait(self.resid)
        Y = vACC
        for u in range(4):
            r = vRES + 2 * u
            e(f"""
            v_lshlrev_b32 v40, 16, v{r}
            v_and_b32 v41, s{sMASK}, v{r}
            v_lshlrev_b32 v42, 16, v{r+1}
            v_and_b32 v43, s{sMASK}, v{r+1}
            v_pk_add_f32 {vr(Y+4*u,2)}, {vr(Y+4*u,2)}, v[40:41]
            v_pk_add_f32 {vr(Y+4*u+2,2)}, {vr(Y+4*u+2,2)}, v[42:43]
            """)
            if w3q:
                self.W3ids.append(e(w3q.popleft()))
        assert not w3q
        for p in range(2):
            for uu in range(2):
                u = 2 * p + uu
                e(f'v_cvt_pk_bf16_f32 v{56+4*p+2*uu}, v{Y+4*u}, v{Y+4*u+1}')
                e(f'v_cvt_pk_bf16_f32 v{56+4*p+2*uu+1}, v{Y+4*u+2}, v{Y+4*u+3}')
        e(f"""
        s_lshl_b32 s{t0}, s{sI}, 1
        s_lshr_b32 s{t1}, s{sW}, 1
        s_add_u32 s{t0}, s{t0}, s{t1}
        s_lshl_b32 s{t0}, s{t0}, 15
        s_lshl_b32 s{t1}, s{sJ}, 12
        s_add_u32 s{t0}, s{t0}, s{t1}
        s_and_b32 s{t1}, s{sW}, 1
        s_lshl_b32 s{t1}, s{t1}, 8
        s_add_u32 s{t0}, s{t0}, s{t1}
        s_add_u32 s{t0}, s{t0}, {WS_X1}
        v_lshrrev_b32 v40, 5, v{vL}
        v_lshlrev_b32 v40, 10, v40
        v_bfe_u32 v41, v{vL}, 4, 1
        v_lshl_add_u32 v40, v41, 9, v40
        v_and_b32 v41, 15, v{vL}
        v_lshl_add_u32 v40, v41, 4, v40
        v_add_u32 v{vST}, s{t0}, v40
        """)
        self.both_scopes([f'buffer_store_dwordx4 v[56:59], v{vST}, {srd(S_WS)}, 0 offen',
                          f'buffer_store_dwordx4 v[60:63], v{vST}, {srd(S_WS)}, 0 offen offset:2048'])
        e(f'v_pk_mul_f32 v[42:43], {vr(Y,2)}, {vr(Y,2)}')
        e(f'v_pk_add_f32 v[40:41], {vr(Y,2)}, {vr(Y+2,2)}')
        e(f'v_pk_fma_f32 v[42:43], {vr(Y+2,2)}, {vr(Y+2,2)}, v[42:43]')
        for k in range(2, 8):
            e(f'v_pk_add_f32 v[40:41], v[40:41], {vr(Y+2*k,2)}')
            e(f'v_pk_fma_f32 v[42:43], {vr(Y+2*k,2)}, {vr(Y+2*k,2)}, v[42:43]')
        e('v_add_f32 v40, v40, v41\nv_add_f32 v41, v42, v43')
        e('v_mov_b32 v42, v40\nv_mov_b32 v43, v41')
        e('v_permlane16_swap_b32 v40, v42\nv_permlane16_swap_b32 v41, v43')
        e('v_add_f32 v40, v40, v42\nv_add_f32 v41, v41, v43')
        e('v_mov_b32 v42, v40\nv_mov_b32 v43, v41')
        e('v_permlane32_swap_b32 v40, v42\nv_permlane32_swap_b32 v41, v43')
        e('v_add_f32 v40, v40, v42\nv_add_f32 v41, v41, v43')
        e(f"""
        s_lshl_b32 s{t0}, s{sJ}, 11
        s_lshl_b32 s{t1}, s{sI}, 6
        s_add_u32 s{t0}, s{t0}, s{t1}
        s_lshl_b32 s{t1}, s{sW}, 4
        s_add_u32 s{t0}, s{t0}, s{t1}
        s_lshl_b32 s{t0}, s{t0}, 3
        s_add_u32 s{t0}, s{t0}, {WS_STATS}
        v_and_b32 v44, 15, v{vL}
        v_lshlrev_b32 v44, 3, v44
        v_add_u32 v44, s{t0}, v44
        s_mov_b32 exec_lo, 0xffff
        s_mov_b32 exec_hi, 0
        """)
        st = self.both_scopes([f'buffer_store_dwordx2 v[40:41], v44, {srd(S_WS)}, 0 offen'])
        e.raw('s_mov_b64 exec, -1')
        e(f'v_add_u32 v{vFA}, 256, v{vFA}')
        return st

    def w4_dma_setup(self):
        e = self.e
        e(f"""
        v_lshrrev_b32 v40, 3, v{vL}
        v_and_b32 v41, 7, v{vL}
        v_bfe_u32 v42, v{vL}, 4, 1
        v_lshlrev_b32 v42, 2, v42
        v_xor_b32 v41, v41, v42
        s_lshl_b32 s{t1}, s{sJ}, 7
        v_lshlrev_b32 v40, 10, v40
        v_add_u32 v40, s{t1}, v40
        v_lshl_add_u32 v{vD}, v41, 4, v40
        v_add_u32 v{vD+1}, 7168, v{vD}
        v_add_u32 v{vD+2}, {2*7168}, v{vD}
        v_add_u32 v{vD+3}, {3*7168}, v{vD}
        s_lshr_b32 s38, s{sW}, 1
        s_and_b32 s39, s{sW}, 1
        s_mul_i32 s40, s38, {43*16*1024}
        """)

    def w4_queue(self, pi0, npw, blk0, blk_kh, n_instr=None):
        q = deque()
        n = n_instr if n_instr is not None else 2 * npw
        for g in range(0, n, 4):
            for k in range(min(4, n - g)):
                pre = ''
                if k == 0:
                    pre = (f's_mul_i32 s{t0}, s39, {n * 8192}\n'
                           f's_add_u32 s{t0}, s{t0}, s40\n'
                           f's_add_u32 s{sOFFW}, s{t0}, {pi0*16*1024 + g*8192}\n'
                           f's_mul_i32 s{t0}, s39, {n * 1024}\n'
                           f's_mul_i32 s{t1}, s38, {blk_kh * 1024}\n'
                           f's_add_u32 s{t0}, s{t0}, s{t1}\n'
                           f's_add_u32 m0, s{t0}, {blk0*1024 + g*1024}\ns_nop 0\n')
                q.append(pre + f'buffer_load_dwordx4 v{vD+k}, {srd(S_W4)}, s{sOFFW} offen offset:{k*1024} lds')
        return q

    def load_stats(self, tile_sgpr_expr_dst):
        e = self.e
        e(f"""
        s_lshl_b32 s{t0}, {tile_sgpr_expr_dst}, 8
        s_add_u32 s{t0}, s{t0}, {WS_STATS}
        v_and_b32 v40, 31, v{vL}
        v_lshlrev_b32 v40, 3, v40
        v_lshrrev_b32 v41, 5, v{vL}
        v_lshl_add_u32 v40, v41, 16, v40
        v_add_u32 v40, s{t0}, v40
        """)
        last = None
        for jj in range(4):
            e(f's_mov_b32 s{t1}, {jj*16384}')
            last = e(f'buffer_load_dwordx2 {vr(48+2*jj,2)}, v40, {srd(S_WS)}, s{t1} offen sc1')
        return last

    def reduce_stats(self, mean_out, rstd_out):
        e = self.e
        e('v_pk_add_f32 v[48:49], v[48:49], v[50:51]\nv_pk_add_f32 v[52:53], v[52:53], v[54:55]')
        e('v_pk_add_f32 v[48:49], v[48:49], v[52:53]')
        e('v_mov_b32 v50, v48\nv_mov_b32 v51, v49')
        e('v_permlane32_swap_b32 v48, v50\nv_permlane32_swap_b32 v49, v51')
        e('v_add_f32 v48, v48, v50\nv_add_f32 v49, v49, v51')
        self.finish_stats(48, 49, mean_out, rstd_out)

    def gelu3_list(self, u, out):
        L = []
        for g in range(4):
            U = [vT + k for k in range(4)]
            S = [vT + 4 + k for k in range(4)]
            a = [vACC3 + 16 * u + 4 * g + k for k in range(4)]
            c = [vCS3 + 16 * u + 4 * g + k for k in range(4)]
            L += [f'v_fma_f32 v{U[k]}, v{vMEAN}, v{c[k]}, v{a[k]}' for k in range(4)]
            L += [f'v_mul_f32 v{S[k]}, v{U[k]}, v{U[k]}' for k in range(4)]
            L += [f'v_fma_f32 v{S[k]}, v{S[k]}, v{vGB}, v{vGA}' for k in range(4)]
            L += [f'v_mul_f32 v{S[k]}, v{S[k]}, v{U[k]}' for k in range(4)]
            L += [f'v_exp_f32 v{S[k]}, v{S[k]}' for k in range(4)]
            L += [f'v_add_f32 v{S[k]}, 1.0, v{S[k]}' for k in range(4)]
            L += [f'v_rcp_f32 v{S[k]}, v{S[k]}' for k in range(4)]
            L += [f'v_mul_f32 v{U[k]}, v{U[k]}, v{S[k]}' for k in range(4)]
            L += [f'v_cvt_pk_bf16_f32 v{out+2*g}, v{U[0]}, v{U[1]}', f'v_cvt_pk_bf16_f32 v{out+2*g+1}, v{U[2]}, v{U[3]}']
        return L

    def gelu3_packed(self, u, out, slots):
        e = self.e
        for g in range(2):
            X = [vT + 2 * k for k in range(4)]
            Y = [vT + 8 + 2 * k for k in range(4)]
            a = [vACC3 + 16 * u + 8 * g + 2 * k for k in range(4)]
            c = [vCS3 + 16 * u + 8 * g + 2 * k for k in range(4)]
            for k in range(4):
                e(f'v_pk_fma_f32 {vr(X[k],2)}, {vr(c[k],2)}, {vr(vMEAN,2)}, {vr(a[k],2)} op_sel_hi:[1,0,1]')
            for k in range(4):
                e(f'v_pk_mul_f32 {vr(Y[k],2)}, {vr(X[k],2)}, {vr(X[k],2)}')
            slots()
            for k in range(4):
                e(f'v_pk_fma_f32 {vr(Y[k],2)}, {vr(Y[k],2)}, {vr(vGB,2)}, {vr(vGA,2)} op_sel_hi:[1,0,0]')
            for k in range(4):
                e(f'v_pk_mul_f32 {vr(Y[k],2)}, {vr(Y[k],2)}, {vr(X[k],2)}')
            slots()
            for k in range(4):
                e(f'v_exp_f32 v{Y[k]}, v{Y[k]}\nv_exp_f32 v{Y[k]+1}, v{Y[k]+1}')
            slots()
            for k in range(4):
                e(f'v_pk_add_f32 {vr(Y[k],2)}, {vr(Y[k],2)}, 1.0 op_sel_hi:[1,0]')
            for k in range(4):
                e(f'v_rcp_f32 v{Y[k]}, v{Y[k]}\nv_rcp_f32 v{Y[k]+1}, v{Y[k]+1}')
            slots()
            for k in range(4):
                e(f'v_pk_mul_f32 {vr(X[k],2)}, {vr(X[k],2)}, {vr(Y[k],2)}')
            for k in range(4):
                e(f'v_cvt_pk_bf16_f32 v{out+4*g+k}, v{X[k]}, v{X[k]+1}')

    def tr32_lane(self, dst, row_bytes, u_xor=None):
        e = self.e
        e(f"""
        v_lshrrev_b32 v40, 5, v{vL}
        v_bfe_u32 v41, v{vL}, 2, 2
        """)
        if row_bytes == 64:
            e(f"""
            v_lshl_add_u32 v42, v40, 2, v41
            v_lshlrev_b32 v42, 6, v42
            """)
        else:
            e(f"""
            v_lshl_add_u32 v42, v40, 3, v41
            v_lshlrev_b32 v42, 7, v42
            """)
        e(f"""
        v_bfe_u32 v43, v{vL}, 4, 1
        v_lshl_add_u32 v42, v43, 5, v42
        v_and_b32 v43, 1, v{vL}
        v_lshl_add_u32 v42, v43, 4, v42
        v_bfe_u32 v43, v{vL}, 1, 1
        v_lshl_add_u32 v{dst}, v43, 3, v42
        """)

    def p3(self, st2):
        e = self.e
        self.publish(st2)
        self.stamp()
        self.tr32_lane(vA, 64)
        e(f'v_add_u32 v{vA+1}, {LDS_C}, v{vA}')
        e.wait(self.W3ids[-1])
        e.wait_lg_all()
        e.raw('s_barrier')
        acc = [44, 45, 46]
        rd = {}
        def cs_reads(idx):
            b = vFB + 12 * (idx % 2)
            e(self.w3_base(idx, f's{t2}'))
            e(f'v_add_u32 v{vA+2+idx%2}, s{t2}, v{vA}')
            last = None
            for u in range(3):
                if idx == 7 and u == 2:
                    e(f's_cmp_eq_u32 s{sW}, 3\ns_cselect_b32 s{t2}, {63*1024 - 2048}, s{t2}')
                    e(f'v_add_u32 v{vA+2+idx%2}, s{t2}, v{vA}')
                for m in range(2):
                    last = e(f'ds_read_b64_tr_b16 {vr(b+4*u+2*m,2)}, v{vA+2+idx%2} offset:{u*1024+m*512}')
            return last
        rd[0] = cs_reads(0)
        for idx in range(8):
            if idx + 1 < 8:
                rd[idx + 1] = cs_reads(idx + 1)
            e.wait(rd[idx])
            b = vFB + 12 * (idx % 2)
            for r in range(4):
                for u in range(3):
                    c = '0' if (idx == 0 and r == 0) else f'v{acc[u]}'
                    e(f'v_dot2_f32_bf16 v{acc[u]}, v{b+4*u+r}, v{vONE}, {c}')
        for u in range(3):
            self.xhalf_sum(acc[u], 47)
        e(f"""
        v_and_b32 v40, 31, v{vL}
        v_lshlrev_b32 v40, 2, v40
        v_add_u32 v40, {CS3_LDS}, v40
        s_mov_b32 exec_hi, 0
        """)
        for u in range(3):
            e(f'ds_add_f32 v40, v{acc[u]} offset:{u*128}')
        e.raw('s_mov_b64 exec, -1')
        e.wait_lg_all()
        e.raw('s_barrier')
        e(f"""
        v_lshrrev_b32 v40, 5, v{vL}
        v_lshlrev_b32 v40, 4, v40
        v_add_u32 v40, {CS3_LDS}, v40
        """)
        for u in range(3):
            for qq in range(4):
                e(f'ds_read_b128 {vr(vCS3+16*u+4*qq)}, v40 offset:{u*128+qq*32}')

        def w3rd(sig, u, dst, agpr=False):
            b = w3_block(sig, u)
            va, off = (vA + 1, (b - 128) * 1024) if b >= 128 else (vA, b * 1024)
            f = ar if agpr else vr
            return [f'ds_read_b64_tr_b16 {f(dst+2*m,2)}, v{va} offset:{off+m*512}' for m in range(2)]
        pre = None
        for sig in range(32):
            for ln in w3rd(sig, 2, 128 + 4 * sig, agpr=True):
                pre = e(ln)
        e(f"""
        s_lshl_b32 s41, s{sG}, 2
        s_add_u32 s41, s41, s{sW}
        s_lshl_b32 s{t0}, s41, 15
        s_add_u32 s{t0}, s{t0}, {WS_X1}
        v_lshlrev_b32 v40, 4, v{vL}
        v_add_u32 v{vXO}, s{t0}, v40
        s_lshr_b32 s{t0}, s{sW}, 1
        s_lshl_b32 s{t0}, s{t0}, 5
        s_and_b32 s{t1}, s{sW}, 1
        s_lshl_b32 s{t1}, s{t1}, 4
        s_add_u32 s{t0}, s{t0}, s{t1}
        s_lshl_b32 s{t0}, s{t0}, 2
        s_lshl_b32 s{t1}, s{sG}, 10
        s_add_u32 s{t0}, s{t0}, s{t1}
        s_add_u32 s{t0}, s{t0}, 256
        v_and_b32 v40, 15, v{vL}
        v_lshlrev_b32 v40, 2, v40
        v_add_u32 v{vPA}, s{t0}, v40
        """)
        e.wait(pre)
        self.poll()
        self.stamp()
        stats = self.load_stats('s41')
        Xl = [None] * 32
        def xload(s):
            p = f's_mov_b32 s{sOFF}, {(s//4)*4096}\n' if s % 4 == 0 else ''
            Xl[s] = e(p + f'buffer_load_dwordx4 {ar(4*s)}, v{vXO}, {srd(S_WS)}, s{sOFF} offen offset:{(s%4)*1024} sc1')
        DIST = self.o.get('p3_dist', 10)
        for s in range(DIST):
            xload(s)
        self.w4_dma_setup()
        w4a = self.w4_queue(0, 8, 64, 32)
        self.W4a = []
        rdA = {}
        def fr(sig):
            b = vFB + 8 * (sig % 3)
            last = None
            out = []
            for u in range(2):
                out += w3rd(sig, u, b + 4 * u)
            return out
        for sig in (0, 1):
            for ln in fr(sig):
                rdA[sig] = e(ln)
        e.wait(stats)
        self.reduce_stats(vMEAN, vRSTD)
        e(f"""
        v_mul_f32 v{vGA}, s{sC1}, v{vRSTD}
        v_mul_f32 v40, v{vRSTD}, v{vRSTD}
        v_mul_f32 v40, v40, v{vRSTD}
        v_mul_f32 v{vGB}, s{sC2}, v40
        """)
        for sig in range(32):
            if sig == 16:
                e.raw('s_barrier')
            e.wait(Xl[sig], rdA[sig])
            nxt = deque(fr(sig + 2)) if sig + 2 < 32 else deque()
            b = vFB + 8 * (sig % 3)
            for u in range(2):
                c = '0' if sig == 0 else vr(vACC3 + 16 * u, 16)
                e(f'v_mfma_f32_32x32x16_bf16 {vr(vACC3+16*u,16)}, {vr(b+4*u)}, {ar(4*sig)}, {c}')
                for _ in range(2):
                    if nxt:
                        rdA[sig + 2] = e(nxt.popleft())
            if sig + DIST < 32:
                xload(sig + DIST)
            elif w4a:
                self.W4a.append(e(w4a.popleft()))
        self.stamp()
        gl = deque(self.gelu3_list(0, 56))
        ntot = len(gl)
        for sig in range(32):
            c = '0' if sig == 0 else vr(vACC3 + 32, 16)
            e(f'v_mfma_f32_32x32x16_bf16 {vr(vACC3+32,16)}, {ar(128+4*sig)}, {ar(4*sig)}, {c}')
            want = ntot * (sig + 1) // 32
            while ntot - len(gl) < want:
                e(gl.popleft())
            if sig % 4 == 3 and w4a:
                self.W4a.append(e(w4a.popleft()))
        while w4a:
            self.W4a.append(e(w4a.popleft()))
        e(f"""
        s_mul_i32 s{t0}, s41, {G_TILE}
        s_lshl_b32 s{t1}, s{sU0}, 11
        s_add_u32 s{t0}, s{t0}, s{t1}
        s_add_u32 s{t0}, s{t0}, {WS_G}
        v_lshlrev_b32 v47, 4, v{vL}
        v_add_u32 v{vST}, s{t0}, v47
        s_mov_b32 s42, 4096
        """)
        st = self.both_scopes([f'buffer_store_dwordx4 v[56:59], v{vST}, {srd(S_WS)}, 0 offen',
                               f'buffer_store_dwordx4 v[60:63], v{vST}, {srd(S_WS)}, 0 offen offset:1024'])
        e.wait(self.W4a[-1])
        e.raw('s_barrier')
        self.stamp()
        self.p4_addr()
        l = None
        for pi in range(3):
            for U in range(2):
                for m in range(2):
                    l = e(f'ds_read_b64_tr_b16 {ar(172+(pi*2+U)*4+2*m,2)}, v{vA+U} offset:{pi*2048+m*512}')
        w4b = self.w4_queue(16, 8, 0, 32)
        w4b.extend(self.w4_queue(32, 4, 128, 16))
        self.W4b = []
        def slots():
            if w4b:
                self.W4b.append(e(w4b.popleft()))
        self.gelu3_packed(1, 56, slots)
        st = self.both_scopes([f'buffer_store_dwordx4 v[56:59], v{vST}, {srd(S_WS)}, 0 offen offset:2048',
                               f'buffer_store_dwordx4 v[60:63], v{vST}, {srd(S_WS)}, 0 offen offset:3072'])
        e.wait(l)
        e.raw('s_barrier')
        w4c = self.w4_queue(40, 0, 64, 32, n_instr=3)
        skip = self.lab('nou2')
        self.gelu3_packed(2, 56, slots)
        e.raw(f's_cmp_ge_u32 s{sQ}, 11')
        e.raw(f's_cbranch_scc1 {skip}')
        a, bl = self.lab('slow'), self.lab('done')
        lines = [f'buffer_store_dwordx4 v[56:59], v{vST}, {srd(S_WS)}, s42 offen',
                 f'buffer_store_dwordx4 v[60:63], v{vST}, {srd(S_WS)}, s42 offen offset:1024']
        e.raw(f's_cmp_eq_u32 s{sLOC}, 0\ns_cbranch_scc1 {a}')
        for ln in lines:
            st2 = e.optional_vm(ln)
        e.raw(f's_branch {bl}')
        e.label(a)
        for ln in lines:
            e.raw(ln + ' sc1')
        e.label(bl)
        e.label(skip)
        e(f"""
        s_lshl_b32 s{t0}, s{sW}, 4
        s_add_u32 s{t0}, s{t0}, s{sQ}
        s_lshl_b32 s{t0}, s{t0}, 2
        s_lshl_b32 s{t1}, s{sG}, 10
        s_add_u32 s{t0}, s{t0}, s{t1}
        s_add_u32 s{t0}, s{t0}, 512
        v_mov_b32 v{vFA}, s{t0}
        """)
        self.stamp()
        e.wait(st2)
        self.publish(None)
        while w4b:
            self.W4b.append(e(w4b.popleft()))
        while w4c:
            self.W4b.append(e(w4c.popleft()))

    def p4_addr(self):
        e = self.e
        self.tr32_lane(48, 128)
        e(f"""
        v_bfe_u32 v41, v{vL}, 3, 1
        v_lshlrev_b32 v41, 6, v41
        s_lshr_b32 s{t0}, s{sW}, 1
        s_lshl_b32 s{t1}, s{t0}, 6
        v_xor_b32 v41, s{t1}, v41
        v_add_u32 v42, v48, v41
        v_xor_b32 v41, 64, v41
        v_add_u32 v43, v48, v41
        s_lshl_b32 s{t1}, s{t0}, 15
        s_add_u32 s{t2}, s{t1}, {64*1024}
        v_add_u32 v{vA}, s{t2}, v42
        v_add_u32 v{vA+1}, s{t2}, v43
        v_add_u32 v{vA+2}, s{t1}, v42
        v_add_u32 v{vA+3}, s{t1}, v43
        s_lshl_b32 s{t1}, s{t0}, 14
        s_add_u32 s{t2}, s{t1}, {128*1024}
        v_add_u32 v{vA+4}, s{t2}, v42
        v_add_u32 v{vA+5}, s{t2}, v43
        """)

    def p4(self):
        e = self.e
        e(f"""
        s_and_b32 s{t0}, s{sI}, 1
        s_lshl_b32 s{t0}, s{t0}, 1
        s_and_b32 s{t1}, s{sW}, 1
        s_add_u32 s{t0}, s{t0}, s{t1}
        s_lshl_b32 s43, s{sG}, 2
        s_add_u32 s43, s43, s{t0}
        s_lshl_b32 s{t0}, s{t0}, 6
        s_lshl_b32 s{t1}, s{sG}, 10
        s_add_u32 s{t0}, s{t0}, s{t1}
        s_add_u32 s{t0}, s{t0}, 512
        v_and_b32 v40, 15, v{vL}
        v_lshlrev_b32 v40, 2, v40
        v_add_u32 v{vPA}, s{t0}, v40
        s_mul_i32 s{t0}, s43, {G_TILE}
        s_mul_i32 s{t1}, s38, {43*1024}
        s_add_u32 s{t0}, s{t0}, s{t1}
        s_add_u32 s{t0}, s{t0}, {WS_G}
        v_lshlrev_b32 v40, 4, v{vL}
        v_add_u32 v{vXO}, s{t0}, v40
        """)
        self.poll()
        self.stamp()
        Xl = [None] * 43
        def xload(s):
            p = f's_mov_b32 s{sOFF}, {(s//4)*4096}\n' if s % 4 == 0 else ''
            Xl[s] = e(p + f'buffer_load_dwordx4 {ar(4*s)}, v{vXO}, {srd(S_WS)}, s{sOFF} offen offset:{(s%4)*1024} sc1')
        DIST = self.o.get('p4_dist', 10)
        for s in range(DIST):
            xload(s)

        def fr(pi):
            b = vFB + 8 * (pi % 3)
            if pi < 16:
                va, off = vA, pi * 2048
            elif pi < 32:
                va, off = vA + 2, (pi - 16) * 2048
            elif pi < 40:
                va, off = vA + 4, (pi - 32) * 2048
            else:
                va, off = vA, (pi - 40) * 2048
            return [f'ds_read_b64_tr_b16 {vr(b+4*U+2*m,2)}, v{va+U} offset:{off+m*512}' for U in range(2) for m in range(2)]
        rd = {}
        extra = deque()
        def resid_setup():
            e(f"""
            s_lshl_b32 s{t0}, s43, 15
            s_lshl_b32 s{t1}, s{sJ}, 1
            s_add_u32 s{t1}, s{t1}, s38
            s_lshl_b32 s{t1}, s{t1}, 11
            s_add_u32 s{t0}, s{t0}, s{t1}
            s_add_u32 s{t0}, s{t0}, {WS_X1}
            v_lshrrev_b32 v40, 5, v{vL}
            v_lshlrev_b32 v40, 10, v40
            v_and_b32 v41, 31, v{vL}
            v_lshl_add_u32 v40, v41, 4, v40
            v_add_u32 v47, s{t0}, v40
            """)
        res = stats = None
        for pi in range(43):
            if pi == 1 or pi == 18:
                e.raw('s_barrier')
            if pi >= 3:
                e.wait(Xl[pi], rd[pi])
            else:
                e.wait(Xl[pi])
            nxt = deque(fr(pi + 2)) if (3 <= pi + 2 < 43) else deque()
            b = vFB + 8 * (pi % 3)
            for U in range(2):
                c = '0' if pi == 0 else vr(vACC3 + 16 * U, 16)
                A = ar(172 + (pi * 2 + U) * 4) if pi < 3 else vr(b + 4 * U)
                e(f'v_mfma_f32_32x32x16_bf16 {vr(vACC3+16*U,16)}, {A}, {ar(4*pi)}, {c}')
                for _ in range(2):
                    if nxt:
                        rd[pi + 2] = e(nxt.popleft())
            if pi + DIST < 43:
                xload(pi + DIST)
            elif pi + DIST == 43:
                resid_setup()
                e(f'buffer_load_dwordx4 {vr(vRES)}, v47, {srd(S_WS)}, 0 offen sc1')
            elif pi + DIST == 44:
                res = e(f'buffer_load_dwordx4 {vr(vRES+4)}, v47, {srd(S_WS)}, 0 offen offset:512 sc1')
            elif pi + DIST == 45:
                stats = self.load_stats('s43')
        self.stamp()
        e(f"""
        s_lshl_b32 s{t0}, s{sW}, 12
        s_add_u32 s{t1}, s{t0}, {EXCH_LDS}
        s_xor_b32 s{t0}, s{t0}, 8192
        s_add_u32 s{t0}, s{t0}, {EXCH_LDS}
        v_lshlrev_b32 v40, 4, v{vL}
        v_add_u32 v41, s{t1}, v40
        v_add_u32 v40, s{t0}, v40
        """)
        for z in range(4):
            e(f'ds_write_b128 v41, {vr(vACC3+16+4*z)} offset:{z*1024}')
        e.wait(stats)
        self.reduce_stats(vMEAN, vRSTD)
        e.wait_lg_all()
        e.raw('s_barrier')
        l = None
        for z in range(4):
            l = e(f'ds_read_b128 {vr(vACC3+16+4*z)}, v40 offset:{z*1024}')
        e(f"""
        s_lshl_b32 s{t0}, s43, 15
        s_lshl_b32 s{t1}, s{sJ}, 7
        s_add_u32 s{t0}, s{t0}, s{t1}
        s_lshl_b32 s{t1}, s38, 6
        s_add_u32 s{t0}, s{t0}, s{t1}
        v_and_b32 v44, 31, v{vL}
        v_lshlrev_b32 v44, 10, v44
        v_lshrrev_b32 v45, 5, v{vL}
        v_lshl_add_u32 v44, v45, 4, v44
        v_add_u32 v{vST}, s{t0}, v44
        """)
        e.wait(res)
        src = {0: vRES, 1: vRES + 4, 2: vRES + 2, 3: vRES + 6}
        for g in range(4):
            r = src[g]
            e(f"""
            v_lshlrev_b32 v{96+4*g}, 16, v{r}
            v_and_b32 v{96+4*g+1}, s{sMASK}, v{r}
            v_lshlrev_b32 v{96+4*g+2}, 16, v{r+1}
            v_and_b32 v{96+4*g+3}, s{sMASK}, v{r+1}
            """)
        e.wait(l)
        for k in range(8):
            e(f'v_pk_add_f32 {vr(vACC3+2*k,2)}, {vr(vACC3+2*k,2)}, {vr(vACC3+16+2*k,2)}')
        for k in range(8):
            e(f'v_pk_fma_f32 {vr(vACC3+2*k,2)}, {vr(vACC3+2*k,2)}, {vr(vRSTD,2)}, {vr(96+2*k,2)} op_sel_hi:[1,0,1]')
        for k in range(8):
            e(f'v_cvt_pk_bf16_f32 v{48+k}, v{vACC3+2*k}, v{vACC3+2*k+1}')
        e(f'buffer_store_dwordx4 v[48:51], v{vST}, {srd(S_OUT)}, 0 offen')
        e(f'buffer_store_dwordx4 v[52:55], v{vST}, {srd(S_OUT)}, 0 offen offset:32')
        self.stamp()

    def dump_stamps(self):
        if not self.stamps:
            return
        e = self.e
        e.raw('s_waitcnt vmcnt(0) lgkmcnt(0)')
        e(f"""
        s_lshl_b32 s{t0}, s2, 2
        s_add_u32 s{t0}, s{t0}, s{sW}
        s_lshl_b32 s{t0}, s{t0}, 7
        s_add_u32 s{t0}, s{t0}, {WS_STAMP}
        v_mov_b32 v40, s{t0}
        s_mov_b64 exec, 1
        """)
        e.raw(f's_memtime s[100:101]')
        e.raw(f's_memrealtime s[36:37]')
        e.raw('s_waitcnt lgkmcnt(0)')
        e(f's_sub_u32 s36, s36, s98')
        for k in range(self.nstamp):
            e(f'v_mov_b32 v41, s{STAMP_REGS[k]}\nbuffer_store_dword v41, v40, {srd(S_WS)}, 0 offen offset:{4*k}')
        e(f'v_mov_b32 v41, s100\nbuffer_store_dword v41, v40, {srd(S_WS)}, 0 offen offset:{4*self.nstamp}')
        e(f'v_mov_b32 v41, s36\nbuffer_store_dword v41, v40, {srd(S_WS)}, 0 offen offset:120')
        e(f'v_mov_b32 v41, s98\nbuffer_store_dword v41, v40, {srd(S_WS)}, 0 offen offset:116')
        e(f'v_mov_b32 v41, s{sLOC}\nbuffer_store_dword v41, v40, {srd(S_WS)}, 0 offen offset:124')
        if self.o.get('dbgdump'):
            skip = self.lab('nodump')
            e(f's_or_b32 s{t0}, s2, s{sW}\ns_cmp_lg_u32 s{t0}, 0\ns_cbranch_scc1 {skip}')
            e('v_mov_b32 v42, 0')
            regs = [36] + [STAMP_REGS[k] for k in (1, 2, 3, 4, 5, 6, 7, 8, 9, 10, 11, 12, 13, 14)] + [100]
            for n, r in enumerate(regs):
                if n:
                    e(f's_sub_u32 s{t0}, s{r}, s{STAMP_REGS[0]}\nv_mov_b32 v41, s{t0}')
                else:
                    e(f'v_mov_b32 v41, s{r}')
                e(f'buffer_store_dword v41, v42, {srd(S_DBG)}, 0 offen offset:{4*n} sc1')
            e.label(skip)

    def build(self):
        e = self.e
        self.prologue()
        st1 = self.p1()
        done = False
        if self.stop_after == 'p1':
            done = True
        if not done:
            st2 = self.p2(st1)
            if self.stop_after == 'p2':
                done = True
        if not done:
            self.p3(st2)
            if self.stop_after == 'p3':
                done = True
        if not done:
            self.p4()
        self.dump_stamps()
        e.label('Lend')
        e.raw('s_endpgm')
        body = e.finalize()
        hdr = open('standalone__mixer_s_mlp__prompt.s.ref').read().split('\n')
        com = [l for l in hdr if l.startswith(';') and '@launch' not in l and 'Override' not in l and 'grid=ceil' not in l][:9]
        text = '\n'.join(com) + '\n'
        text += '; @launch grid=(256,1,1) block=(256,1,1) lds=163840\n'
        text += f'''.amdgcn_target "amdgcn-amd-amdhsa--gfx950"
.text
.globl {KNAME}
.p2align 8
.type {KNAME},@function
{KNAME}:
'''
        text += body
        text += f'''.section .rodata,"a"
.p2align 6
.amdhsa_kernel {KNAME}
  .amdhsa_next_free_vgpr 512
  .amdhsa_next_free_sgpr 102
  .amdhsa_accum_offset 256
  .amdhsa_group_segment_fixed_size 0
  .amdhsa_kernarg_size 64
  .amdhsa_user_sgpr_count 2
  .amdhsa_user_sgpr_kernarg_segment_ptr 1
  .amdhsa_system_sgpr_workgroup_id_x 1
  .amdhsa_float_denorm_mode_32 3
.end_amdhsa_kernel
'''
        return text

if __name__ == '__main__':
    import argparse
    ap = argparse.ArgumentParser()
    ap.add_argument('out')
    ap.add_argument('--stamps', action='store_true')
    ap.add_argument('--stop')
    ap.add_argument('--slow', action='store_true')
    ap.add_argument('--dbgdump', action='store_true')
    a = ap.parse_args()
    g = Gen(stamps=a.stamps, stop_after=a.stop, force_slow=a.slow, dbgdump=a.dbgdump)
    t = g.build()
    open(a.out, 'w').write(t)
    print('wrote', a.out, len(t), 'bytes of text;', 'nops inserted:', g.e.nops_inserted)
```
